```python
import torch

def _softmax(x, axis=-1):
    return torch.softmax(x, dim=axis)
def _gelu(x):
    return torch.nn.functional.gelu(x, approximate="tanh")
def _silu(x):
    return torch.nn.functional.silu(x)
def _sigmoid(x):
    return torch.sigmoid(x)
def _layernorm(x, axis=-1, eps=1e-5):
    m = x.mean(dim=axis, keepdim=True)
    v = x.var(dim=axis, keepdim=True, unbiased=False)
    return (x - m) / torch.sqrt(v + eps)
def _scatter_add(tgt, idx, src, axis=0):
    return tgt.clone().index_add_(axis, idx, src)
def _segment_sum(src, seg, n):
    out = torch.zeros((n,) + src.shape[1:], dtype=src.dtype)
    return out.index_add_(0, seg, src)
def _pad(x, pw):
    flat = tuple(v for pair in reversed(pw) for v in pair)
    return torch.nn.functional.pad(x, flat)

kernel_name = 'gather_scatter__edge_featured_mpnn_gatedgcn__graph'

def setup_inputs():

    _w = (lambda a: (lambda t: t.to(torch.bfloat16) if t.is_floating_point() else t)(torch.as_tensor(a)))
    N, deg, D, De = 10000, 32, 128, max(0, 1)
    E = N * deg
    return {
        "x": _w((lambda *s: torch.randn(*s, dtype=torch.bfloat16) * 0.4)(N, D)),
        "e_attr": _w((lambda *s: torch.randn(*s, dtype=torch.bfloat16) * 1.6)(E, De)),
        "src": _w((lambda lo, hi, *s: torch.randint(lo, hi, s))(0, N, E).to(torch.int64)),
        "dst": _w((lambda lo, hi, *s: torch.randint(lo, hi, s))(0, N, E).to(torch.int64)),
        "w_a": _w((lambda *s: torch.randn(*s, dtype=torch.bfloat16) * 0.4)(D, D)),
        "w_b": _w((lambda *s: torch.randn(*s, dtype=torch.bfloat16) * 0.4)(D, D)),
        "w_c": _w((lambda *s: torch.randn(*s, dtype=torch.bfloat16) * 1.6)(De, D)),
        "w_u": _w((lambda *s: torch.randn(*s, dtype=torch.bfloat16) * 0.05)(D, D)),
        "w_v": _w((lambda *s: torch.randn(*s, dtype=torch.bfloat16) * 0.05)(D, D)),
    }

def reference(x, e_attr, src, dst, w_a, w_b, w_c, w_u, w_v):
    N, D = x.shape
    hv = x @ w_v
    g = x[dst] @ w_a + x[src] @ w_b + e_attr @ w_c
    eta = _sigmoid(g)
    denom = _segment_sum(eta, dst, N) + 1e-6
    eta_n = eta / denom[dst]
    agg = _segment_sum(eta_n * hv[src], dst, N)
    z = x @ w_u + agg
    relu_z = torch.where(z > 0, z, 0 * z)
    return x + relu_z
```

```python
import sys
N = 10000; E = 320000
NAME = "gather_scatter__edge_featured_mpnn_gatedgcn__graph"
HALF_STRIDE = 626 * 4096
T_OFF = 0
A_OFF = 2 * HALF_STRIDE
U_OFF = A_OFF + 5120000
REC_OFF = U_OFF + 5120000
DESC_OFF = REC_OFF + 2560000
P = 125; CHUNK = 2560
NL2E = 0xbfb8aa3b
BIG = 0x40000000
DUMMY_OFF = 10000 * 256

L = []
def e(s): L.append("    " + s)
def lab(s): L.append(s + ":")
def c(s): L.append("    ; " + s)
def vr(a, n): return f"v[{a}:{a+n-1}]"
def sr(a, n): return f"s[{a}:{a+n-1}]"

def srd(s, lo, hi, size, add=None):
    if add is None:
        e(f"s_mov_b32 s{s}, s{lo}"); e(f"s_and_b32 s{s+1}, s{hi}, 0xffff")
    else:
        adds = add if isinstance(add, list) else [add]
        e(f"s_add_u32 s{s}, s{lo}, {adds[0]}"); e(f"s_addc_u32 s{s+1}, s{hi}, 0")
        for a in adds[1:]:
            e(f"s_add_u32 s{s}, s{s}, {a}"); e(f"s_addc_u32 s{s+1}, s{s+1}, 0")
        e(f"s_and_b32 s{s+1}, s{s+1}, 0xffff")
    e(f"s_mov_b32 s{s+2}, {size}"); e(f"s_mov_b32 s{s+3}, 0x20000")

def wave_scan(v):
    for sh in (1, 2, 4, 8):
        e("s_nop 1")
        e(f"v_add_u32_dpp v{v}, v{v}, v{v} row_shr:{sh} row_mask:0xf bank_mask:0xf bound_ctrl:0")
    e("s_nop 1")
    e(f"v_add_u32_dpp v{v}, v{v}, v{v} row_bcast:15 row_mask:0xa bank_mask:0xf")
    e("s_nop 1")
    e(f"v_add_u32_dpp v{v}, v{v}, v{v} row_bcast:31 row_mask:0xc bank_mask:0xf")
    e("s_nop 1")

def load_kernargs():
    e("s_load_dwordx16 s[16:31], s[0:1], 0")
    e("s_load_dwordx8 s[32:39], s[0:1], 64")

def gen_k1():
    NG = 256
    L.append(".p2align 8"); L.append(".globl k1_kernel"); L.append(".type k1_kernel,@function"); lab("k1_kernel")
    e(f"s_cmp_ge_u32 s2, {NG + P}"); e("s_cbranch_scc1 K1_END")
    load_kernargs()
    e(f"s_cmp_ge_u32 s2, {NG}"); e("s_cbranch_scc1 K1_PART")
    e("v_and_b32 v1, 63, v0"); e("v_lshrrev_b32 v2, 6, v0"); e("v_and_b32 v3, 15, v1"); e("v_readfirstlane_b32 s3, v2")
    e("v_lshrrev_b32 v4, 4, v1")
    e("s_and_b32 s4, s2, 1")
    e("s_lshr_b32 s5, s2, 1"); e("s_and_b32 s5, s5, 1")
    e("s_lshr_b32 s6, s2, 2")
    e("v_lshlrev_b32 v5, 11, v4"); e("v_lshl_add_u32 v5, v3, 3, v5")
    e("v_lshlrev_b32 v6, 8, v3"); e("v_lshl_add_u32 v6, v4, 4, v6")
    e("v_lshlrev_b32 v8, 4, v1")
    e("s_lshl_b32 s7, s6, 2"); e("s_add_u32 s7, s7, s3")
    e("s_lshl_b32 s8, s7, 12")
    e(f"s_add_u32 s9, s8, {256*4096}")
    e(f"s_add_u32 s10, s8, {512*4096}")
    e("s_lshl_b32 s11, s3, 13"); e("s_lshl_b32 s12, s4, 7"); e("s_add_u32 s11, s11, s12")
    e("s_waitcnt lgkmcnt(0)")
    srd(40, 16, 17, N * 256)
    e("s_cmp_eq_u32 s5, 0")
    e("s_cselect_b32 s44, s26, s24"); e("s_cselect_b32 s45, s27, s25")
    e("s_cselect_b32 s48, s32, s30"); e("s_cselect_b32 s49, s33, s31")
    e("s_and_b32 s45, s45, 0xffff"); e("s_and_b32 s49, s49, 0xffff")
    e("s_mov_b32 s46, 32768"); e("s_mov_b32 s47, 0x20000"); e("s_mov_b32 s50, 32768"); e("s_mov_b32 s51, 0x20000")
    XA, XB, LW, F, ACC, WF = 32, 48, 64, 96, 96, 128
    for kk in range(4): e(f"buffer_load_dwordx4 {vr(XA+4*kk,4)}, v6, s[40:43], s8 offen offset:{kk*64}")
    for kk in range(4): e(f"buffer_load_dwordx4 {vr(XB+4*kk,4)}, v6, s[40:43], s9 offen offset:{kk*64}")
    for m in range(2):
        for i in range(8):
            e(f"buffer_load_dwordx2 {vr(LW+16*m+2*i,2)}, v5, s[{44+4*m}:{47+4*m}], s11 offen offset:{i*256}")
    e("s_mov_b32 s13, 0x05040100"); e("s_mov_b32 s14, 0x07060302")
    e(f"s_mov_b32 s60, {NL2E:#x}"); e("s_mov_b32 s61, 0xffff0000"); e("s_mov_b32 s62, 0x80000000")
    e("s_lshl_b32 s15, s3, 12"); e("v_add_u32 v9, s15, v8")
    for m in range(2):
        e(f"s_waitcnt vmcnt({8 if m == 0 else 0})")
        for cc in range(4):
            for jj in range(4):
                lo = LW + 16*m + 2*(2*jj) + (cc >> 1); hi = LW + 16*m + 2*(2*jj+1) + (cc >> 1)
                e(f"v_perm_b32 v{F+4*cc+jj}, v{hi}, v{lo}, s{13 + (cc & 1)}")
            e(f"ds_write_b128 v9, {vr(F+4*cc,4)} offset:{m*16384 + cc*1024}")
    e("s_waitcnt lgkmcnt(0)"); e("s_barrier")
    for f in range(32):
        e(f"ds_read_b128 {vr(WF+4*f,4)}, v8 offset:{f*1024}")
    e("s_cmp_eq_u32 s5, 0"); e("s_cbranch_scc0 K1_AU")

    def mfmas(X):
        for kk in range(4):
            if kk == 0: pass
            for m in range(2):
                for cc in range(4):
                    a = ACC + 4*(m*4+cc); w = WF + 4*((m*4+kk)*4+cc)
                    src = "0" if kk == 0 else vr(a,4)
                    e(f"v_mfma_f32_16x16x32_bf16 {vr(a,4)}, {vr(X+4*kk,4)}, {vr(w,4)}, {src}")
    e("s_mul_i32 s12, s4, %d" % HALF_STRIDE)
    srd(52, 38, 39, 10001 * 256, add=["s12"] if T_OFF == 0 else [T_OFF, "s12"])
    e("v_lshlrev_b32 v7, 10, v4"); e("v_lshl_add_u32 v7, v3, 4, v7")
    e("s_cmp_eq_u32 s7, 0"); e("s_cbranch_scc0 K1_NODUMMY")
    e("v_mov_b32 v10, 0x7f80"); e("v_lshlrev_b32 v11, 2, v1")
    e(f"s_mov_b32 s12, {DUMMY_OFF}")
    e("buffer_store_dword v10, v11, s[52:55], s12 offen")
    lab("K1_NODUMMY")
    def epi_bv(st):
        e("s_nop 7"); e("s_nop 2")
        for r in range(4):
            for cc in range(4):
                b = ACC + 4*cc + r; hv = ACC + 16 + 4*cc + r; p = 64 + 4*r + cc; t1 = 80; t2 = 81
                e(f"v_mul_f32 v{t1}, s60, v{b}")
                e(f"v_cvt_pk_bf16_f32 v{t2}, v{t1}, 0")
                e(f"v_and_b32 v{p}, 0x7fffffff, v{hv}")
                e(f"v_sub_u32 v{p}, v{p}, v{t2}")
                e(f"v_add_u32 v{p}, 0x8000, v{p}")
                e(f"v_max_i32 v{p}, 0, v{p}")
                e(f"v_and_or_b32 v{p}, v{p}, s61, v{t2}")
                e(f"v_and_or_b32 v{p}, v{hv}, s62, v{p}")
            e(f"buffer_store_dwordx4 {vr(64+4*r,4)}, v7, s[52:55], s{st} offen offset:{r*256}")
    e("s_waitcnt lgkmcnt(0)")
    mfmas(XA)
    for kk in range(4): e(f"buffer_load_dwordx4 {vr(XA+4*kk,4)}, v6, s[40:43], s10 offen offset:{kk*64}")
    epi_bv(8)
    mfmas(XB)
    epi_bv(9)
    e("s_cmp_ge_u32 s7, 113"); e("s_cbranch_scc1 K1_END")
    e("s_waitcnt vmcnt(8)")
    mfmas(XA)
    epi_bv(10)
    e("s_branch K1_END")
    lab("K1_AU")
    e("s_lshl_b32 s12, s4, 8")
    srd(52, 38, 39, 5120000 - 256, add=[A_OFF, "s12"])
    srd(56, 38, 39, 5120000 - 256, add=[U_OFF, "s12"])
    e("v_lshlrev_b32 v7, 11, v4"); e("v_lshl_add_u32 v7, v3, 4, v7")
    e("s_lshl_b32 s63, s8, 1"); e("s_lshl_b32 s64, s9, 1"); e("s_lshl_b32 s65, s10, 1")
    def epi_au(st):
        e("s_nop 7"); e("s_nop 2")
        for r in range(4):
            for cc in range(4):
                e(f"v_mul_f32 v{64+4*r+cc}, s60, v{ACC+4*cc+r}")
                e(f"v_mov_b32 v{80+4*r+cc}, v{ACC+16+4*cc+r}")
            e(f"buffer_store_dwordx4 {vr(64+4*r,4)}, v7, s[52:55], s{st} offen offset:{r*512}")
            e(f"buffer_store_dwordx4 {vr(80+4*r,4)}, v7, s[56:59], s{st} offen offset:{r*512}")
    e("s_waitcnt lgkmcnt(0)")
    mfmas(XA)
    for kk in range(4): e(f"buffer_load_dwordx4 {vr(XA+4*kk,4)}, v6, s[40:43], s10 offen offset:{kk*64}")
    epi_au(63)
    mfmas(XB)
    epi_au(64)
    e("s_cmp_ge_u32 s7, 113"); e("s_cbranch_scc1 K1_END")
    e("s_waitcnt vmcnt(16)")
    mfmas(XA)
    epi_au(65)
    e("s_branch K1_END")
    lab("K1_PART")
    e(f"s_sub_u32 s3, s2, {NG}")
    e("v_lshlrev_b32 v1, 3, v0"); e("v_lshlrev_b32 v2, 2, v0"); e("v_and_b32 v3, 63, v0")
    e("v_mov_b32 v4, 0"); e("v_mov_b32 v5, 1")
    e("ds_write_b32 v2, v4")
    e("s_mul_i32 s4, s3, 10240"); e("s_add_u32 s5, s4, 4096"); e("s_add_u32 s6, s4, 8192")
    e("s_mul_i32 s7, s3, 5120"); e("s_add_u32 s8, s7, 4096")
    e("s_waitcnt lgkmcnt(0)")
    srd(40, 22, 23, E * 4)
    srd(44, 20, 21, E * 4)
    srd(48, 18, 19, E * 2)
    DS, SS, ES, BK, AD, RK = 10, 20, 30, 40, 50, 60
    so = [(4, 0), (4, 2048), (5, 0), (5, 2048), (6, 0)]
    for j in range(5): e(f"buffer_load_dwordx2 {vr(DS+2*j,2)}, v1, s[40:43], s{so[j][0]} offen offset:{so[j][1]}")
    for j in range(5): e(f"buffer_load_dwordx2 {vr(SS+2*j,2)}, v1, s[44:47], s{so[j][0]} offen offset:{so[j][1]}")
    eo = [(7, 0), (7, 1024), (7, 2048), (7, 3072), (8, 0)]
    for j in range(5): e(f"buffer_load_dword v{ES+j}, v2, s[48:51], s{eo[j][0]} offen offset:{eo[j][1]}")
    srd(52, 38, 39, 2560000, add=REC_OFF)
    srd(56, 38, 39, 262144, add=DESC_OFF)
    e("s_mov_b32 s9, 109951168")
    e("s_movk_i32 s10, 625")
    e("s_barrier")
    e("s_waitcnt vmcnt(10)")
    for k in range(10):
        e(f"v_mul_hi_u32 v{BK+k}, v{DS+k}, s9")
        e(f"v_lshlrev_b32 v{AD+k}, 2, v{BK+k}")
        e(f"ds_add_rtn_u32 v{RK+k}, v{AD+k}, v5")
    for k in range(10):
        e(f"v_mul_lo_u32 v{BK+k}, v{BK+k}, s10")
        e(f"v_add_u32 v{BK+k}, 15, v{BK+k}")
        e(f"v_lshrrev_b32 v{BK+k}, 4, v{BK+k}")
        e(f"v_sub_u32 v{DS+k}, v{DS+k}, v{BK+k}")
    e("s_waitcnt lgkmcnt(0)"); e("s_barrier")
    e("v_lshlrev_b32 v6, 4, v3")
    e("ds_read_b128 v[70:73], v6"); e("ds_read_b32 v78, v2")
    e("s_waitcnt lgkmcnt(0)")
    e("v_add_u32 v74, v70, v71"); e("v_add_u32 v75, v72, v73"); e("v_add_u32 v74, v74, v75"); e("v_mov_b32 v75, v74")
    wave_scan(75)
    e("v_sub_u32 v80, v75, v74"); e("v_add_u32 v81, v80, v70"); e("v_add_u32 v82, v81, v71"); e("v_add_u32 v83, v82, v72")
    e("ds_write_b128 v6, v[80:83] offset:1024")
    e("s_waitcnt lgkmcnt(0)")
    for k in range(10): e(f"ds_read_b32 v{BK+k}, v{AD+k} offset:1024")
    e("ds_read_b32 v79, v2 offset:1024")
    e("s_waitcnt vmcnt(0)")
    for k in range(10):
        e(f"v_lshl_or_b32 v{SS+k}, v{SS+k}, 8, v{DS+k}")
    e("s_mul_i32 s11, s3, %d" % (CHUNK * 8)); e("s_mul_i32 s12, s3, %d" % CHUNK)
    e("s_waitcnt lgkmcnt(0)")
    for k in range(10):
        j = k >> 1
        e(f"v_add_lshl_u32 v{AD+k}, v{BK+k}, v{RK+k}, 3")
        e(f"v_mov_b32 v84, v{SS+k}")
        if k & 1: e(f"v_and_b32 v85, 0xffff0000, v{ES+j}")
        else: e(f"v_lshlrev_b32 v85, 16, v{ES+j}")
        e(f"buffer_store_dwordx2 v[84:85], v{AD+k}, s[52:55], s11 offen")
        e("s_nop 1")
    e("v_add_u32 v84, s12, v79"); e("v_mov_b32 v85, v78")
    e("v_lshlrev_b32 v86, 10, v0"); e("s_lshl_b32 s11, s3, 3")
    e("buffer_store_dwordx2 v[84:85], v86, s[56:59], s11 offen")
    lab("K1_END")
    e("s_endpgm")

CNT_L = 0; FLAG_L = 256; ACC_L = 512; AL_L = ACC_L + 40 * 512; REC_L = AL_L + 40 * 256
K2_LDS = 65536
def gen_k2():
    L.append(".p2align 8"); L.append(".globl k2_kernel"); L.append(".type k2_kernel,@function"); lab("k2_kernel")
    e("s_cmp_ge_u32 s2, 512"); e("s_cbranch_scc1 K2_END")
    load_kernargs()
    LANE, LO16, RA, SEL, WC, A, NUM, DEN, T, VA, STP, INC, AOFF = 58, 1, 2, 3, 4, 8, 12, 16, 20, 24, 25, 26, 27
    REC, PB, U, X = 28, 36, 52, 56
    e("s_lshr_b32 s3, s2, 1"); e("s_and_b32 s4, s2, 1")
    e("s_mul_i32 s6, s3, 625"); e("s_add_u32 s6, s6, 15"); e("s_lshr_b32 s5, s6, 4"); e("s_add_u32 s6, s6, 625"); e("s_lshr_b32 s6, s6, 4"); e("s_sub_u32 s7, s6, s5")
    e(f"v_and_b32 v{LANE}, 63, v0"); e("v_lshrrev_b32 v59, 6, v0"); e(f"v_and_b32 v60, 15, v0"); e("v_readfirstlane_b32 s8, v59")
    e(f"v_lshlrev_b32 v{LO16}, 4, v60")
    for i in range(4): e(f"v_mov_b32 v{REC+i}, 0")
    e("v_lshlrev_b32 v61, 4, v0")
    e(f"ds_write_b128 v61, {vr(REC,4)} offset:{ACC_L}")
    e("s_cmp_ge_u32 s8, 4"); e("s_cbranch_scc1 K2_Z1")
    e(f"ds_write_b128 v61, {vr(REC,4)} offset:{ACC_L + 16384}")
    e("s_cmp_ge_u32 s8, 2"); e("s_cbranch_scc1 K2_Z1")
    e("v_lshlrev_b32 v62, 2, v0"); e(f"ds_write_b32 v62, v{REC}")
    lab("K2_Z1")
    e("s_waitcnt lgkmcnt(0)")
    e("s_lshl_b32 s9, s3, 10"); srd(40, 38, 39, 1000, add=[DESC_OFF, "s9"])
    srd(44, 38, 39, 2560000, add=REC_OFF)
    e("s_lshl_b32 s9, s5, 9"); e("s_lshl_b32 s10, s4, 8"); e("s_add_u32 s9, s9, s10")
    e("s_sub_u32 s11, s7, 1"); e("s_lshl_b32 s12, s11, 9"); e("s_add_u32 s12, s12, 256")
    srd(48, 38, 39, "s12", add=[A_OFF, "s9"]); srd(52, 38, 39, "s12", add=[U_OFF, "s9"])
    e("s_lshl_b32 s9, s5, 8"); e("s_lshl_b32 s10, s4, 7"); e("s_add_u32 s9, s9, s10")
    e("s_lshl_b32 s12, s11, 8"); e("s_add_u32 s12, s12, 128")
    srd(56, 16, 17, "s12", add=["s9"]); srd(60, 34, 35, "s12", add=["s9"])
    e("s_mul_i32 s9, s4, %d" % HALF_STRIDE); srd(64, 38, 39, 10001 * 256, add=["s9"])
    e("s_lshl_b32 s9, s4, 7"); srd(68, 28, 29, 128, add=["s9"])
    e("v_lshrrev_b32 v61, 3, v0"); e("v_lshlrev_b32 v61, 3, v61")
    e("buffer_load_dwordx2 v[62:63], v61, s[40:43], 0 offen")
    e("v_lshrrev_b32 v59, 4, v0")
    e(f"v_lshl_add_u32 v61, v59, 9, v{LO16}")
    e(f"buffer_load_dwordx4 {vr(PB,4)}, v61, s[48:51], 0 offen")
    e(f"buffer_load_dwordx4 {vr(U,4)}, v61, s[52:55], 0 offen")
    e("v_lshlrev_b32 v61, 3, v60"); e(f"buffer_load_dwordx2 {vr(WC,2)}, v61, s[68:71], 0 offen")
    e("v_lshl_add_u32 v61, v59, 8, v61"); e(f"buffer_load_dwordx2 {vr(X,2)}, v61, s[56:59], 0 offen")
    e(f"v_mov_b32 v{SEL}, 0x3f80")
    e(f"v_lshrrev_b32 v61, 4, v{LANE}")
    e("v_and_b32 v59, 1, v61"); e("v_lshrrev_b32 v61, 1, v61"); e("v_lshl_or_b32 v61, v59, 1, v61")
    e(f"v_lshl_add_u32 v{AOFF}, v61, 2, v{LO16}")
    e(f"s_mov_b32 s72, {NL2E:#x}"); e(f"s_mov_b32 s73, {BIG:#x}"); e("s_mov_b32 s74, 0")
    e("s_waitcnt vmcnt(3)")
    e("s_cmp_ge_u32 s8, 10"); e("s_cbranch_scc1 K2_NOAL")
    e("v_lshrrev_b32 v59, 4, v0"); e(f"v_lshl_add_u32 v61, v59, 8, v{LO16}")
    e(f"ds_write_b128 v61, {vr(PB,4)} offset:{AL_L}")
    lab("K2_NOAL")
    e("s_waitcnt vmcnt(1)")
    e(f"v_and_b32 v{WC+3}, 0xffff0000, v{WC+1}"); e(f"v_lshlrev_b32 v{WC+2}, 16, v{WC+1}")
    e(f"v_and_b32 v{WC+1}, 0xffff0000, v{WC}"); e(f"v_lshlrev_b32 v{WC}, 16, v{WC}")
    for i in range(4): e(f"v_mul_f32 v{WC+i}, s72, v{WC+i}")
    lab("K2_ROUND")
    RK, DL, BS = 36, 40, 44
    e("v_and_b32 v61, 7, v0"); e("v_add_u32 v61, s74, v61")
    for it in range(4):
        e(f"v_add_u32 v59, {8*it}, v61")
        e(f"v_cmp_lt_u32 s[{16+2*it}:{17+2*it}], v59, v63")
        e(f"v_add_lshl_u32 v{BS+it}, v62, v59, 3")
    e("s_mov_b64 s[24:25], exec")
    for it in range(4):
        e(f"s_mov_b64 exec, s[{16+2*it}:{17+2*it}]")
        e(f"s_cbranch_execz K2_NOLD{it}")
        e(f"buffer_load_dwordx2 {vr(REC+2*it,2)}, v{BS+it}, s[44:47], 0 offen")
        lab(f"K2_NOLD{it}")
    e("s_mov_b64 exec, s[24:25]")
    e("v_add_u32 v59, 32, v61"); e("v_and_b32 v59, 0xfffffff8, v59")
    e("s_waitcnt lgkmcnt(0)"); e("s_barrier")
    e("v_cmp_gt_u32 vcc, v63, v59")
    e("s_and_saveexec_b64 s[26:27], vcc"); e("s_cbranch_execz K2_NOFLAG2")
    e("v_mov_b32 v59, 1"); e(f"v_mov_b32 v60, {FLAG_L}"); e("ds_write_b32 v60, v59")
    lab("K2_NOFLAG2")
    e("s_mov_b64 exec, s[24:25]")
    e("v_mov_b32 v59, 1")
    e("s_waitcnt vmcnt(0)")
    for it in range(4):
        e(f"v_and_b32 v{DL+it}, 0xff, v{REC+2*it}"); e(f"v_lshlrev_b32 v{DL+it}, 2, v{DL+it}")
        e(f"v_and_b32 v{REC+2*it}, 0xffffff00, v{REC+2*it}")
    for it in range(4):
        e(f"s_mov_b64 exec, s[{16+2*it}:{17+2*it}]")
        e(f"ds_add_rtn_u32 v{RK+it}, v{DL+it}, v59 offset:{CNT_L}")
    e("s_mov_b64 exec, s[24:25]")
    e("s_waitcnt lgkmcnt(0)"); e("s_barrier")
    e(f"v_lshlrev_b32 v60, 2, v{LANE}")
    e(f"ds_read_b32 v59, v60 offset:{CNT_L}"); e(f"v_mov_b32 v61, {FLAG_L}"); e("ds_read_b32 v61, v61")
    e("s_waitcnt lgkmcnt(0)")
    e(f"v_add_u32 v{STP}, 3, v59"); e(f"v_lshrrev_b32 v{STP}, 2, v{STP}"); e(f"v_mov_b32 v{INC}, v{STP}")
    e("v_readfirstlane_b32 s75, v61")
    wave_scan(INC)
    e(f"v_sub_u32 v60, v{INC}, v{STP}")
    e(f"v_readlane_b32 s9, v{INC}, 63")
    for it in range(4): e(f"ds_bpermute_b32 v{BS+it}, v{DL+it}, v60")
    e("s_waitcnt lgkmcnt(0)")
    for it in range(4):
        e(f"v_lshl_add_u32 v{BS+it}, v{BS+it}, 2, v{RK+it}"); e(f"v_lshlrev_b32 v{BS+it}, 3, v{BS+it}")
    for it in range(4):
        e(f"s_mov_b64 exec, s[{16+2*it}:{17+2*it}]")
        e(f"ds_write_b64 v{BS+it}, {vr(REC+2*it,2)} offset:{REC_L}")
    e("s_mov_b64 exec, s[24:25]")
    e("s_cmp_lg_u32 s8, 0"); e("s_cbranch_scc1 K2_NOPAD")
    e("v_lshl_add_u32 v60, v60, 2, v59")
    e(f"v_lshlrev_b32 v61, 2, v{INC}")
    e(f"v_mov_b32 v{RK}, {DUMMY_OFF}"); e(f"v_mov_b32 v{RK+1}, 0")
    for k in range(3):
        e("v_cmp_lt_u32 vcc, v60, v61")
        e(f"v_lshlrev_b32 v{DL}, 3, v60")
        e("s_and_saveexec_b64 s[26:27], vcc"); e(f"s_cbranch_execz K2_NOPADk{k}")
        e(f"ds_write_b64 v{DL}, {vr(RK,2)} offset:{REC_L}")
        lab(f"K2_NOPADk{k}")
        e("s_mov_b64 exec, s[24:25]")
        e("v_add_u32 v60, 1, v60")
    lab("K2_NOPAD")
    e("s_waitcnt lgkmcnt(0)"); e("s_barrier")
    e("s_mul_i32 s10, s9, s8"); e("s_lshr_b32 s10, s10, 4")
    e("s_add_u32 s11, s8, 1"); e("s_mul_i32 s11, s9, s11"); e("s_lshr_b32 s11, s11, 4")
    e("s_sub_u32 s12, s11, s10")
    e("s_cmp_eq_u32 s12, 0"); e("s_cbranch_scc1 K2_MEND")
    e(f"v_cmp_ge_u32 vcc, s10, v{INC}")
    e("s_bcnt1_i32_b64 s13, vcc")
    e(f"v_readlane_b32 s14, v{INC}, s13"); e("s_sub_u32 s14, s14, s10")
    e("s_min_u32 s14, s14, s12"); e("s_sub_u32 s15, s12, s14")
    e(f"v_lshrrev_b32 v{RA}, 4, v{LANE}"); e(f"v_lshlrev_b32 v{RA}, 3, v{RA}")
    e("s_lshl_b32 s10, s10, 5"); e(f"s_add_u32 s10, s10, {REC_L}"); e(f"v_add_u32 v{RA}, s10, v{RA}")
    for k in range(4): e(f"ds_read_b64 {vr(REC+2*k,2)}, v{RA} offset:{32*k}")
    e("s_lshl_b32 s10, s13, 8"); e(f"v_add_u32 v{VA}, s10, v{LO16}"); e(f"ds_read_b128 {vr(A,4)}, v{VA} offset:{AL_L}")
    for i in range(4): e(f"v_mov_b32 v{NUM+i}, 0"); e(f"v_mov_b32 v{DEN+i}, 0")
    e(f"v_add_u32 v{RA}, 128, v{RA}")
    e("s_waitcnt lgkmcnt(0)")
    for k in range(3):
        e(f"s_cmp_gt_u32 s12, {k}"); e("s_cselect_b32 s28, 0, s73")
        e(f"v_add_u32 v{VA}, v{REC+2*k}, v{LO16}")
        e(f"buffer_load_dwordx4 {vr(PB+4*k,4)}, v{VA}, s[64:67], s28 offen")
    e("s_sub_i32 s12, s12, 3")
    for k in range(4):
        lab(f"K2_L{k}")
        r = REC + 2*k; p = PB + 4*k; kn = (k + 3) % 4
        e(f"v_pk_fma_f32 {vr(T,2)}, {vr(r,2)}, {vr(WC,2)}, {vr(A,2)} op_sel:[1,0,0] op_sel_hi:[1,1,1]")
        e(f"v_pk_fma_f32 {vr(T+2,2)}, {vr(r,2)}, {vr(WC+2,2)}, {vr(A+2,2)} op_sel:[1,0,0] op_sel_hi:[1,1,1]")
        e("s_cmp_gt_i32 s12, 0"); e("s_cselect_b32 s28, 0, s73"); e("s_sub_i32 s12, s12, 1")
        e("s_waitcnt lgkmcnt(0)")
        e(f"v_add_u32 v{VA}, v{REC+2*kn}, v{LO16}")
        e(f"buffer_load_dwordx4 {vr(PB+4*kn,4)}, v{VA}, s[64:67], s28 offen")
        e(f"ds_read_b64 {vr(r,2)}, v{RA} offset:{32*k}")
        e("s_waitcnt vmcnt(3)")
        for i in range(4): e(f"v_dot2_f32_bf16 v{T+i}, v{p+i}, v{SEL}, v{T+i}")
        for i in range(4): e(f"v_exp_f32 v{T+i}, v{T+i}")
        for i in range(4): e(f"v_add_f32 v{T+i}, 1.0, v{T+i}")
        for i in range(4): e(f"v_rcp_f32 v{T+i}, v{T+i}")
        if k == 3: e(f"v_add_u32 v{RA}, 128, v{RA}")
        e("s_sub_u32 s14, s14, 1")
        for i in range(4): e(f"v_add_f32 v{DEN+i}, v{DEN+i}, v{T+i}")
        e(f"v_pk_fma_f32 {vr(NUM,2)}, {vr(T,2)}, {vr(p,2)}, {vr(NUM,2)}")
        e(f"v_pk_fma_f32 {vr(NUM+2,2)}, {vr(T+2,2)}, {vr(p+2,2)}, {vr(NUM+2,2)}")
        e("s_cmp_eq_u32 s14, 0"); e(f"s_cbranch_scc1 K2_F{k}")
        if k == 3: e("s_branch K2_L0")
    for k in range(4):
        lab(f"K2_F{k}")
        e("s_nop 1")
        e(f"v_permlane32_swap_b32 v{NUM}, v{NUM+1}"); e(f"v_permlane32_swap_b32 v{NUM+2}, v{NUM+3}")
        e(f"v_permlane32_swap_b32 v{DEN}, v{DEN+1}"); e(f"v_permlane32_swap_b32 v{DEN+2}, v{DEN+3}")
        e("s_lshl_b32 s10, s13, 9")
        e(f"v_add_f32 v{NUM}, v{NUM}, v{NUM+1}"); e(f"v_add_f32 v{NUM+2}, v{NUM+2}, v{NUM+3}")
        e(f"v_add_f32 v{DEN}, v{DEN}, v{DEN+1}"); e(f"v_add_f32 v{DEN+2}, v{DEN+2}, v{DEN+3}")
        e(f"v_add_u32 v{VA}, s10, v{AOFF}")
        e("s_nop 0")
        e(f"v_permlane16_swap_b32 v{NUM}, v{NUM+2}"); e(f"v_permlane16_swap_b32 v{DEN}, v{DEN+2}")
        e("s_nop 0")
        e(f"v_add_f32 v{NUM}, v{NUM}, v{NUM+2}"); e(f"v_add_f32 v{DEN}, v{DEN}, v{DEN+2}")
        e(f"ds_add_f32 v{VA}, v{NUM} offset:{ACC_L}"); e(f"ds_add_f32 v{VA}, v{DEN} offset:{ACC_L+256}")
        e("s_cmp_eq_u32 s15, 0"); e("s_cbranch_scc1 K2_MEND")
        lab(f"K2_FN{k}")
        e("s_add_u32 s13, s13, 1")
        e(f"v_readlane_b32 s14, v{STP}, s13")
        e("s_cmp_eq_u32 s14, 0"); e(f"s_cbranch_scc1 K2_FN{k}")
        e("s_min_u32 s14, s14, s15"); e("s_sub_u32 s15, s15, s14")
        e("s_lshl_b32 s10, s13, 8"); e(f"v_add_u32 v{VA}, s10, v{LO16}"); e(f"ds_read_b128 {vr(A,4)}, v{VA} offset:{AL_L}")
        for i in range(4): e(f"v_mov_b32 v{NUM+i}, 0"); e(f"v_mov_b32 v{DEN+i}, 0")
        e("s_waitcnt lgkmcnt(0)")
        e(f"s_branch K2_L{(k+1)%4}")
    lab("K2_MEND")
    e("s_waitcnt vmcnt(0) lgkmcnt(0)")
    e("s_barrier")
    e("s_cmp_eq_u32 s75, 0"); e("s_cbranch_scc1 K2_FIN")
    e("s_cmp_ge_u32 s8, 2"); e("s_cbranch_scc1 K2_NR")
    e("v_lshlrev_b32 v60, 2, v0"); e("v_mov_b32 v59, 0"); e("ds_write_b32 v60, v59")
    lab("K2_NR")
    e("s_add_u32 s74, s74, 32")
    e("s_branch K2_ROUND")
    lab("K2_FIN")
    e("v_lshrrev_b32 v59, 4, v0"); e(f"v_lshl_add_u32 v61, v59, 9, v{LO16}")
    e(f"ds_read_b128 {vr(NUM,4)}, v61 offset:{ACC_L}"); e(f"ds_read_b128 {vr(DEN,4)}, v61 offset:{ACC_L+256}")
    e(f"v_lshlrev_b32 v{A}, 16, v{X}"); e(f"v_and_b32 v{A+1}, 0xffff0000, v{X}")
    e(f"v_lshlrev_b32 v{A+2}, 16, v{X+1}"); e(f"v_and_b32 v{A+3}, 0xffff0000, v{X+1}")
    e("s_mov_b32 s10, 0x358637bd")
    e("s_waitcnt lgkmcnt(0)")
    for i in range(4): e(f"v_add_f32 v{DEN+i}, s10, v{DEN+i}")
    for i in range(4): e(f"v_rcp_f32 v{DEN+i}, v{DEN+i}")
    e("s_nop 0")
    for i in range(4): e(f"v_fma_f32 v{NUM+i}, v{NUM+i}, v{DEN+i}, v{U+i}")
    for i in range(4):
        e(f"v_mul_f32 v{T+i}, 0, v{NUM+i}")
        e(f"v_cmp_gt_f32 vcc, v{NUM+i}, 0")
        e("s_nop 1")
        e(f"v_cndmask_b32 v{NUM+i}, v{T+i}, v{NUM+i}, vcc")
        e(f"v_add_f32 v{NUM+i}, v{NUM+i}, v{A+i}")
    e(f"v_cvt_pk_bf16_f32 v{T}, v{NUM}, v{NUM+1}"); e(f"v_cvt_pk_bf16_f32 v{T+1}, v{NUM+2}, v{NUM+3}")
    e(f"v_lshrrev_b32 v61, 1, v{LO16}"); e("v_lshl_add_u32 v61, v59, 8, v61")
    e(f"buffer_store_dwordx2 {vr(T,2)}, v61, s[60:63], 0 offen")
    lab("K2_END")
    e("s_endpgm")

def kd(name, vgpr, sgpr):
    return f""".p2align 6
.amdhsa_kernel {name}
  .amdhsa_next_free_vgpr {vgpr}
  .amdhsa_next_free_sgpr {sgpr}
  .amdhsa_accum_offset {(vgpr + 3) // 4 * 4}
  .amdhsa_group_segment_fixed_size 0
  .amdhsa_kernarg_size 96
  .amdhsa_user_sgpr_count 2
  .amdhsa_user_sgpr_kernarg_segment_ptr 1
  .amdhsa_system_sgpr_workgroup_id_x 1
.end_amdhsa_kernel
"""

hdr = open("cdna_kernels/" + NAME + ".s.ref").read().split("; Override launch geometry")[0]
gen_k1(); gen_k2()
out = hdr
out += "; @launch kernel=k1_kernel grid=(381,1,1) block=(256,1,1) lds=32768\n"
out += f"; @launch kernel=k2_kernel grid=(512,1,1) block=(1024,1,1) lds={K2_LDS}\n"
out += '.amdgcn_target "amdgcn-amd-amdhsa--gfx950"\n.text\n'
out += "\n".join(L) + "\n"
out += '.section .rodata,"a"\n' + kd("k1_kernel", 256, 96) + kd("k2_kernel", 64, 80)
dst = sys.argv[1] if len(sys.argv) > 1 else "cdna_kernels/" + NAME + ".s"
open(dst, "w").write(out)
print("wrote", dst, len(L), "lines")
```

```python
import sys, os
N = 10000; E = 320000
NAME = "gather_scatter__edge_featured_mpnn_gatedgcn__graph"
T_OFF = 0
AU_OFF = 1256 * 4096
CELL_OFF = AU_OFF + 1250 * 4096
CELL_BYTES = 256 * 128 * 256
REC_OFF = CELL_OFF + CELL_BYTES
P = 125; CHUNK = 2560
REC_BYTES = P * CHUNK * 16
NL2E = 0xbfb8aa3b
BIG = 0x40000000
DUMMY_OFF = 10000 * 512
ENV = os.environ.get
STAMPS = ENV("STAMPS") == "1"
STAMP_OFF = 32 << 20
STT = ENV("STT", "nt"); STT = (" " + STT) if STT else ""
STR = ENV("STR", ""); STR = (" " + STR) if STR else ""
RING = int(ENV("RING", "4"))

L = []
def e(s): L.append("    " + s)
def lab(s): L.append(s + ":")
def vr(a, n): return f"v[{a}:{a+n-1}]"

def srd(s, lo, hi, size, add=None):
    if add is None:
        e(f"s_mov_b32 s{s}, s{lo}"); e(f"s_and_b32 s{s+1}, s{hi}, 0xffff")
    else:
        adds = add if isinstance(add, list) else [add]
        e(f"s_add_u32 s{s}, s{lo}, {adds[0]}"); e(f"s_addc_u32 s{s+1}, s{hi}, 0")
        for a in adds[1:]:
            e(f"s_add_u32 s{s}, s{s}, {a}"); e(f"s_addc_u32 s{s+1}, s{s+1}, 0")
        e(f"s_and_b32 s{s+1}, s{s+1}, 0xffff")
    e(f"s_mov_b32 s{s+2}, {size}"); e(f"s_mov_b32 s{s+3}, 0x20000")

def stamp(idx, sbase, tmp):
    if not STAMPS: return
    e(f"s_memrealtime s[{tmp}:{tmp+1}]"); e("s_waitcnt lgkmcnt(0)"); e(f"s_mov_b32 s{sbase+idx}, s{tmp}")
def stamp_flush(n, sbase, vS, kern, nwaves, sq):
    if not STAMPS: return
    e(f"v_mov_b32 v{vS}, 0")
    for i in range(n): e(f"v_writelane_b32 v{vS}, s{sbase+i}, {i}")
    e(f"s_load_dwordx2 s[{sq}:{sq+1}], s[0:1], 88"); e("s_waitcnt lgkmcnt(0)")
    e(f"s_add_u32 s{sq}, s{sq}, {STAMP_OFF + kern * (4 << 20)}"); e(f"s_addc_u32 s{sq+1}, s{sq+1}, 0"); e(f"s_and_b32 s{sq+1}, s{sq+1}, 0xffff")
    e(f"s_mov_b32 s{sq+2}, 0x400000"); e(f"s_mov_b32 s{sq+3}, 0x20000")
    e(f"v_lshrrev_b32 v{vS+1}, 6, v0"); e("s_nop 0"); e(f"v_readfirstlane_b32 s{sq+4}, v{vS+1}")
    e(f"s_mul_i32 s{sq+5}, s2, {nwaves}"); e(f"s_add_u32 s{sq+4}, s{sq+4}, s{sq+5}"); e(f"s_lshl_b32 s{sq+4}, s{sq+4}, 8")
    e(f"v_and_b32 v{vS+1}, 63, v0"); e(f"v_lshlrev_b32 v{vS+1}, 2, v{vS+1}")
    e(f"buffer_store_dword v{vS}, v{vS+1}, s[{sq}:{sq+3}], s{sq+4} offen")

def wave_scan(v):
    for sh in (1, 2, 4, 8):
        e("s_nop 1")
        e(f"v_add_u32_dpp v{v}, v{v}, v{v} row_shr:{sh} row_mask:0xf bank_mask:0xf bound_ctrl:0")
    e("s_nop 1")
    e(f"v_add_u32_dpp v{v}, v{v}, v{v} row_bcast:15 row_mask:0xa bank_mask:0xf")
    e("s_nop 1")
    e(f"v_add_u32_dpp v{v}, v{v}, v{v} row_bcast:31 row_mask:0xc bank_mask:0xf")
    e("s_nop 1")

def load_kernargs():
    e("s_load_dwordx16 s[16:31], s[0:1], 0")
    e("s_load_dwordx8 s[32:39], s[0:1], 64")

def gen_k1():
    NG = 256
    L.append(".p2align 8"); L.append(".globl k1_kernel"); L.append(".type k1_kernel,@function"); lab("k1_kernel")
    e(f"s_cmp_ge_u32 s2, {NG + P}"); e("s_cbranch_scc1 K1_END2")
    load_kernargs()
    if STAMPS:
        for i in range(12): e(f"s_mov_b32 s{70+i}, 0")
    stamp(0, 70, 90)
    e(f"s_cmp_ge_u32 s2, {NG}"); e("s_cbranch_scc1 K1_PART")
    e("v_and_b32 v1, 63, v0"); e("v_lshrrev_b32 v2, 6, v0"); e("v_and_b32 v3, 15, v1"); e("v_readfirstlane_b32 s3, v2")
    e("v_lshrrev_b32 v4, 4, v1")
    e("s_and_b32 s4, s2, 1")
    e("s_lshr_b32 s5, s2, 1"); e("s_and_b32 s5, s5, 1")
    e("s_lshr_b32 s6, s2, 2")
    e("v_lshlrev_b32 v5, 11, v4"); e("v_lshl_add_u32 v5, v3, 3, v5")
    e("v_lshlrev_b32 v6, 8, v3"); e("v_lshl_add_u32 v6, v4, 4, v6")
    e("v_lshlrev_b32 v8, 4, v1")
    e("v_lshlrev_b32 v7, 11, v4"); e("v_lshl_add_u32 v7, v3, 4, v7")
    e("s_lshl_b32 s7, s6, 2"); e("s_add_u32 s7, s7, s3")
    e("s_lshl_b32 s8, s7, 12")
    e(f"s_add_u32 s9, s8, {256*4096}")
    e(f"s_add_u32 s10, s8, {512*4096}")
    e("s_lshl_b32 s11, s3, 13"); e("s_lshl_b32 s12, s4, 7"); e("s_add_u32 s11, s11, s12")
    e("s_waitcnt lgkmcnt(0)")
    XA, XB, LW, F, ACC, WF = 32, 48, 64, 96, 96, 128
    e("s_cmp_eq_u32 s5, 0")
    e("s_cselect_b32 s44, s26, s30"); e("s_cselect_b32 s45, s27, s31"); e("s_cselect_b32 s48, s32, s24"); e("s_cselect_b32 s49, s33, s25")
    e(f"s_mov_b32 s60, {NL2E:#x}")
    e("s_cselect_b32 s63, s60, 1.0"); e("s_cselect_b32 s64, 1.0, s60")
    e(f"s_mov_b32 s12, {AU_OFF}"); e("s_cselect_b32 s12, 0, s12")
    e("s_and_b32 s45, s45, 0xffff"); e("s_and_b32 s49, s49, 0xffff")
    e("s_mov_b32 s46, 32768"); e("s_mov_b32 s47, 0x20000"); e("s_mov_b32 s50, 32768"); e("s_mov_b32 s51, 0x20000")
    for m in range(2):
        for i in range(8):
            e(f"buffer_load_dwordx2 {vr(LW+16*m+2*i,2)}, v5, s[{44+4*m}:{47+4*m}], s11 offen offset:{i*256}")
    srd(40, 16, 17, N * 256)
    for kk in range(4): e(f"buffer_load_dwordx4 {vr(XA+4*kk,4)}, v6, s[40:43], s8 offen offset:{kk*64}")
    for kk in range(4): e(f"buffer_load_dwordx4 {vr(XB+4*kk,4)}, v6, s[40:43], s9 offen offset:{kk*64}")
    e("s_mov_b32 s13, 0x05040100"); e("s_mov_b32 s14, 0x07060302")
    e("s_mov_b32 s61, 0xffff0000"); e("s_mov_b32 s62, 0x80000000")
    e("s_lshl_b32 s15, s3, 12"); e("v_add_u32 v9, s15, v8")
    e("s_lshl_b32 s15, s4, 8")
    srd(52, 38, 39, 10001 * 512 - 256, add=["s12", "s15"])
    stamp(1, 70, 90)
    for m in range(2):
        e(f"s_waitcnt vmcnt({16 if m == 0 else 8})")
        for cc in range(4):
            for jj in range(4):
                lo = LW + 16*m + 2*(2*jj) + (cc >> 1); hi = LW + 16*m + 2*(2*jj+1) + (cc >> 1)
                e(f"v_perm_b32 v{F+4*cc+jj}, v{hi}, v{lo}, s{13 + (cc & 1)}")
            e(f"ds_write_b128 v9, {vr(F+4*cc,4)} offset:{m*16384 + cc*1024}")
    stamp(2, 70, 90)
    e("s_waitcnt lgkmcnt(0)"); e("s_barrier")
    for f in range(32):
        e(f"ds_read_b128 {vr(WF+4*f,4)}, v8 offset:{f*1024}")
    e("s_or_b32 s12, s7, s5"); e("s_cmp_eq_u32 s12, 0"); e("s_cbranch_scc0 K1_NODUMMY")
    e("v_mov_b32 v10, 0x7f80"); e("v_lshlrev_b32 v11, 2, v1")
    e(f"s_mov_b32 s12, {DUMMY_OFF}")
    e("buffer_store_dword v10, v11, s[52:55], s12 offen")
    lab("K1_NODUMMY")
    e("s_waitcnt vmcnt(0) lgkmcnt(0)")
    stamp(3, 70, 90)
    lab("K1_TILE")
    for kk in range(4):
        for m in range(2):
            for cc in range(4):
                a = ACC + 4*(m*4+cc); w = WF + 4*((m*4+kk)*4+cc)
                src = "0" if kk == 0 else vr(a,4)
                e(f"v_mfma_f32_16x16x32_bf16 {vr(a,4)}, {vr(XA+4*kk,4)}, {vr(w,4)}, {src}")
    e("s_waitcnt vmcnt(4)")
    for i in range(16): e(f"v_mov_b32 v{XA+i}, v{XB+i}")
    for kk in range(4): e(f"buffer_load_dwordx4 {vr(XB+4*kk,4)}, v6, s[40:43], s10 offen offset:{kk*64}")
    e("s_lshl_b32 s12, s8, 1")
    for r in range(4):
        for cc in range(4):
            b = ACC + 4*cc + r; hv = ACC + 16 + 4*cc + r; p = 64 + 4*r + cc; t1 = 80 + (cc & 1) * 4; t2 = t1 + 1; t3 = t1 + 2
            e(f"v_mul_f32 v{t1}, s63, v{b}")
            e(f"v_mul_f32 v{t3}, s64, v{hv}")
            e(f"v_cvt_pk_bf16_f32 v{t2}, v{t1}, 0")
            e(f"v_and_b32 v{p}, 0x7fffffff, v{t3}")
            e(f"v_add_u32 v{p}, 0x8000, v{p}")
            e(f"v_sub_u32 v{p}, v{p}, v{t2}")
            e(f"v_max_i32 v{p}, 0, v{p}")
            e(f"v_and_or_b32 v{p}, v{p}, s61, v{t2}")
            e(f"v_and_or_b32 v{p}, v{t3}, s62, v{p}")
        e(f"buffer_store_dwordx4 {vr(64+4*r,4)}, v7, s[52:55], s12 offen offset:{r*512}" + STT)
    e("s_cmp_lt_u32 s9, %d" % (625 * 4096)); e("s_mov_b32 s8, s9"); e("s_mov_b32 s9, s10"); e(f"s_mov_b32 s10, {BIG:#x}")
    e("s_cbranch_scc1 K1_TILE")
    e("s_branch K1_END")
    lab("K1_PART")
    e(f"s_sub_u32 s3, s2, {NG}")
    CEL, CNT, OVC = 0, 65536, 65536 + 1024
    e("v_lshlrev_b32 v1, 4, v0"); e("v_lshlrev_b32 v2, 2, v0"); e("v_lshlrev_b32 v7, 3, v0")
    e("v_mov_b32 v4, 0"); e("v_mov_b32 v5, 1"); e(f"v_add_u32 v3, {CNT}, v2")
    e("ds_write_b32 v3, v4"); e(f"v_mov_b32 v6, {OVC}"); e("ds_write_b32 v6, v4")
    e("s_mul_i32 s4, s3, 10240"); e("s_add_u32 s5, s4, 4096"); e("s_add_u32 s6, s4, 8192")
    e("s_mul_i32 s7, s3, 5120"); e("s_add_u32 s8, s7, 4096")
    e("s_waitcnt lgkmcnt(0)")
    e("s_barrier")
    DS, SS, ES, BK, AD, RK = 10, 20, 30, 40, 50, 60
    srd(40, 22, 23, E * 4)
    e(f"buffer_load_dwordx4 {vr(DS,4)}, v1, s[40:43], s4 offen"); e(f"buffer_load_dwordx4 {vr(DS+4,4)}, v1, s[40:43], s5 offen")
    e(f"buffer_load_dwordx2 {vr(DS+8,2)}, v7, s[40:43], s6 offen")
    srd(44, 20, 21, E * 4)
    e(f"buffer_load_dwordx4 {vr(SS,4)}, v1, s[44:47], s4 offen"); e(f"buffer_load_dwordx4 {vr(SS+4,4)}, v1, s[44:47], s5 offen")
    e(f"buffer_load_dwordx2 {vr(SS+8,2)}, v7, s[44:47], s6 offen")
    srd(48, 18, 19, E * 2)
    e(f"buffer_load_dwordx2 {vr(ES,2)}, v7, s[48:51], s7 offen"); e(f"buffer_load_dwordx2 {vr(ES+2,2)}, v7, s[48:51], s7 offen offset:2048")
    e(f"buffer_load_dword v{ES+4}, v2, s[48:51], s8 offen")
    srd(52, 38, 39, CELL_BYTES, add=CELL_OFF)
    srd(60, 38, 39, REC_BYTES, add=REC_OFF)
    e("s_mov_b32 s9, 109951168"); e("s_movk_i32 s10, 625")
    stamp(1, 70, 90)
    e("s_waitcnt vmcnt(6)")
    stamp(2, 70, 90)
    for k in range(10):
        e(f"v_mul_hi_u32 v{BK+k}, v{DS+k}, s9")
        e(f"v_lshl_add_u32 v{AD+k}, v{BK+k}, 2, v3") if False else None
        e(f"v_lshlrev_b32 v{AD+k}, 2, v{BK+k}"); e(f"v_add_u32 v{AD+k}, {CNT}, v{AD+k}")
        e(f"ds_add_rtn_u32 v{RK+k}, v{AD+k}, v5")
    for k in range(10):
        e(f"v_mul_lo_u32 v{AD+k}, v{BK+k}, s10")
        e(f"v_add_u32 v{AD+k}, 15, v{AD+k}")
        e(f"v_lshrrev_b32 v{AD+k}, 4, v{AD+k}")
        e(f"v_sub_u32 v{DS+k}, v{DS+k}, v{AD+k}")
    e("s_waitcnt vmcnt(0)")
    stamp(3, 70, 90)
    for k in range(10):
        j = k >> 1
        e(f"v_lshl_or_b32 v{84+2*k}, v{SS+k}, 8, v{DS+k}")
        if k & 1: e(f"v_and_b32 v{85+2*k}, 0xffff0000, v{ES+j}")
        else: e(f"v_lshlrev_b32 v{85+2*k}, 16, v{ES+j}")
    e("s_mov_b64 s[22:23], exec"); e("s_mov_b64 s[20:21], 0")
    e("s_waitcnt lgkmcnt(0)")
    for k in range(10):
        e(f"v_lshlrev_b32 v{AD+k}, 8, v{BK+k}"); e(f"v_lshl_add_u32 v{AD+k}, v{RK+k}, 3, v{AD+k}")
        e(f"v_cmp_gt_u32 vcc, 31, v{RK+k}")
        e("s_andn2_b64 s[24:25], exec, vcc"); e("s_or_b64 s[20:21], s[20:21], s[24:25]")
        e("s_mov_b64 exec, vcc")
        e(f"ds_write_b64 v{AD+k}, {vr(84+2*k,2)} offset:8")
        e("s_mov_b64 exec, s[22:23]")
    e("s_cmp_eq_u64 s[20:21], 0"); e("s_cbranch_scc1 K1_NOOVF")
    e("s_mul_i32 s11, s3, %d" % (CHUNK * 16))
    for k in range(10):
        e(f"v_cmp_le_u32 vcc, 31, v{RK+k}")
        e("s_mov_b64 exec, vcc"); e(f"s_cbranch_execz K1_OV{k}")
        e(f"ds_add_rtn_u32 v70, v6, v5")
        e(f"v_mov_b32 v72, v{84+2*k}"); e(f"v_mov_b32 v73, v{85+2*k}"); e(f"v_mov_b32 v74, v{BK+k}"); e("v_mov_b32 v75, 0")
        e("s_waitcnt lgkmcnt(0)")
        e("v_lshlrev_b32 v70, 4, v70")
        e("buffer_store_dwordx4 v[72:75], v70, s[60:63], s11 offen")
        lab(f"K1_OV{k}")
        e("s_mov_b64 exec, s[22:23]")
    lab("K1_NOOVF")
    e("s_waitcnt lgkmcnt(0)"); e("s_barrier")
    stamp(5, 70, 90)
    e("v_lshrrev_b32 v12, 3, v0"); e("v_and_b32 v13, 7, v0")
    e(f"v_lshlrev_b32 v14, 2, v12"); e(f"v_add_u32 v14, {CNT}, v14")
    e("v_lshlrev_b32 v16, 8, v12"); e("v_lshl_add_u32 v16, v13, 4, v16")
    e("v_lshlrev_b32 v15, 15, v12"); e("v_lshl_add_u32 v15, v13, 4, v15")
    e("s_lshl_b32 s11, s3, 8")
    e("ds_read_b32 v17, v6")
    for ps in range(8): e(f"ds_read_b32 v{20+ps}, v14 offset:{ps*128}")
    for ps in range(8): e(f"ds_read_b128 {vr(40+4*ps,4)}, v16 offset:{ps*8192}")
    e("v_cmp_eq_u32 s[24:25], 0, v13")
    e("v_lshlrev_b32 v13, 1, v13")
    for ps in range(8):
        e(f"s_waitcnt lgkmcnt({7-ps})")
        e(f"v_cndmask_b32 v{40+4*ps}, v{40+4*ps}, v{20+ps}, s[24:25]"); e(f"v_cndmask_b32 v{41+4*ps}, v{41+4*ps}, v17, s[24:25]")
        e(f"v_cmp_le_u32 vcc, v13, v{20+ps}")
        e("s_mov_b64 exec, vcc")
        e(f"buffer_store_dwordx4 {vr(40+4*ps,4)}, v15, s[52:55], s11 offen" + STR)
        e("s_mov_b64 exec, s[22:23]")
        e(f"s_add_u32 s11, s11, {32*32768}")
    e("v_add_u32 v13, 16, v13")
    e(f"s_sub_u32 s11, s11, {8*32*32768 - 128}")
    for ps in range(8):
        e(f"v_cmp_le_u32 vcc, v13, v{20+ps}")
        e("s_mov_b64 exec, vcc"); e(f"s_cbranch_execz K1_SH{ps}")
        e(f"ds_read_b128 {vr(40+4*ps,4)}, v16 offset:{ps*8192+128}")
        e("s_waitcnt lgkmcnt(0)")
        e(f"buffer_store_dwordx4 {vr(40+4*ps,4)}, v15, s[52:55], s11 offen" + STR)
        lab(f"K1_SH{ps}")
        e("s_mov_b64 exec, s[22:23]")
        e(f"s_add_u32 s11, s11, {32*32768}")
    lab("K1_END")
    if STAMPS:
        stamp(6, 70, 90)
        e("s_waitcnt vmcnt(0)")
        stamp(8, 70, 90)
        stamp_flush(12, 70, 1, 0, 4, 84)
    lab("K1_END2")
    e("s_endpgm")

CNT_L = 0; FLAG_L = 256; HID_L = 320; ACC_L = 512; AL_L = ACC_L + 20 * 1024; REC_L = AL_L + 20 * 512; HEAD_L = REC_L + (3875 + 32) * 8 + 264
K2_LDS = HEAD_L + 16 * 1024
def gen_k2():
    L.append(".p2align 8"); L.append(".globl k2_kernel"); L.append(".type k2_kernel,@function"); lab("k2_kernel")
    e("s_cmp_ge_u32 s2, 512"); e("s_cbranch_scc1 K2_END")
    load_kernargs()
    LO16, RA, LANE, WC, A, NUM, DEN, T, VA, STP, INC, AOFF = 1, 2, 3, 4, 8, 12, 16, 20, 24, 25, 26, 27
    X, DSC = 28, 32
    assert RING == 4
    REC = 34; PB = 42
    t0, t1, t2, t3, FO = 58, 59, 60, 61, 62
    NV = 64
    e("s_lshr_b32 s3, s2, 4"); e("s_lshl_b32 s3, s3, 3"); e("s_and_b32 s4, s2, 7"); e("s_or_b32 s3, s3, s4")
    e("s_lshr_b32 s4, s2, 3"); e("s_and_b32 s4, s4, 1"); e("s_mul_i32 s4, s4, 20")
    e("s_mul_i32 s6, s3, 625"); e("s_add_u32 s6, s6, 15"); e("s_lshr_b32 s5, s6, 4"); e("s_add_u32 s6, s6, 625"); e("s_lshr_b32 s6, s6, 4")
    e("s_add_u32 s5, s5, s4"); e("s_sub_u32 s7, s6, s5"); e("s_min_u32 s7, s7, 20")
    e(f"v_and_b32 v{LANE}, 63, v0"); e(f"v_lshrrev_b32 v{t0}, 6, v0"); e(f"v_and_b32 v{t1}, 31, v0"); e(f"v_readfirstlane_b32 s8, v{t0}")
    e(f"v_lshlrev_b32 v{LO16}, 4, v{t1}")
    if STAMPS: e("s_memrealtime s[70:71]"); e("s_waitcnt lgkmcnt(0)"); e("s_mov_b32 s15, s70")
    e(f"v_lshlrev_b32 v{VA}, 5, v0"); e(f"v_and_b32 v{VA}, 0xffffff00, v{VA}"); e(f"v_and_b32 v{t2}, 7, v0"); e(f"v_lshl_add_u32 v{VA}, v{t2}, 4, v{VA}")
    e(f"v_lshlrev_b32 v{FO}, 5, v0")
    e(f"v_lshlrev_b32 v{t3}, 4, v0")
    for i in range(4): e(f"v_mov_b32 v{T+i}, 0")
    e(f"ds_write_b128 v{t3}, {vr(T,4)} offset:{ACC_L}")
    e("s_cmp_ge_u32 s8, 4"); e("s_cbranch_scc1 K2_Z1")
    e(f"ds_write_b128 v{t3}, {vr(T,4)} offset:{ACC_L+16384}")
    e("s_cmp_ge_u32 s8, 2"); e("s_cbranch_scc1 K2_Z1")
    e(f"v_lshlrev_b32 v{t2}, 2, v0"); e(f"ds_write_b32 v{t2}, v{T}")
    lab("K2_Z1")
    e("s_waitcnt lgkmcnt(0)")
    e("s_lshl_b32 s10, s3, 15"); srd(40, 38, 39, 32768, add=[CELL_OFF, "s10"])
    CR = REC; AUR = PB + 8
    e(f"buffer_load_dwordx4 {vr(CR,4)}, v{VA}, s[40:43], 0 offen")
    e(f"buffer_load_dwordx4 {vr(CR+4,4)}, v{VA}, s[40:43], 0 offen offset:128")
    e("s_barrier")
    srd(68, 28, 29, 256)
    e(f"v_lshrrev_b32 v{t2}, 1, v{LO16}"); e(f"buffer_load_dwordx2 {vr(WC,2)}, v{t2}, s[68:71], 0 offen")
    e("s_lshl_b32 s9, s5, 9"); e("s_lshl_b32 s12, s7, 9"); srd(48, 38, 39, "s12", add=[AU_OFF, "s9"])
    e("s_lshl_b32 s9, s5, 8"); e("s_lshl_b32 s12, s7, 8")
    srd(52, 16, 17, "s12", add=["s9"]); srd(60, 34, 35, "s12", add=["s9"])
    e("s_cmp_ge_u32 s8, 5"); e("s_cbranch_scc1 K2_NOAU0")
    e(f"buffer_load_dwordx4 {vr(AUR,4)}, v{FO}, s[48:51], 0 offen"); e(f"buffer_load_dwordx4 {vr(AUR+4,4)}, v{FO}, s[48:51], 0 offen offset:16")
    e(f"buffer_load_dwordx4 {vr(X,4)}, v{t3}, s[52:55], 0 offen")
    lab("K2_NOAU0")
    srd(44, 38, 39, REC_BYTES, add=REC_OFF)
    srd(64, 38, 39, 10001 * 512)
    e(f"s_mov_b32 s29, {NL2E:#x}"); e(f"s_mov_b32 s30, {BIG:#x}"); e("s_mov_b32 s31, 0"); e("s_mov_b32 s32, 0")
    e("s_mov_b64 s[24:25], exec")
    if STAMPS:
        e("s_mov_b32 s33, s15")
        for i in range(1, 7): e(f"s_mov_b32 s{33+i}, 0")
    e(f"v_lshrrev_b32 v{t2}, 5, v{LANE}"); e(f"v_lshl_add_u32 v{AOFF}, v{t2}, 2, v{LO16}")
    e("s_cmp_ge_u32 s8, 5"); e("s_cbranch_scc1 K2_W1"); e("s_waitcnt vmcnt(4)"); e("s_branch K2_W2")
    lab("K2_W1"); e("s_waitcnt vmcnt(1)"); lab("K2_W2")
    stamp(1, 33, 26)
    e(f"v_mov_b32_dpp v{DSC}, v{CR} quad_perm:[0,0,0,0] row_mask:0xf bank_mask:0xf"); e(f"v_mov_b32_dpp v{DSC+1}, v{CR+1} quad_perm:[0,0,0,0] row_mask:0xf bank_mask:0xf")
    e("s_nop 1")
    e(f"v_mov_b32_dpp v{DSC}, v{DSC} row_shr:4 row_mask:0xf bank_mask:0xa"); e(f"v_mov_b32_dpp v{DSC+1}, v{DSC+1} row_shr:4 row_mask:0xf bank_mask:0xa")
    e("v_cmp_gt_u32 vcc, %d, v0" % (P * 8)); e("s_nop 1"); e(f"v_cndmask_b32 v{DSC}, 0, v{DSC}, vcc")
    e(f"v_and_b32 v{t1}, 7, v0"); e(f"v_lshlrev_b32 v{t1}, 1, v{t1}")
    RK, DL, BS = PB, PB + 4, NUM
    for it in range(4):
        sl = (it & 1) + 16 * (it >> 1)
        e(f"v_add_u32 v{t0}, {sl - 1}, v{t1}")
        e(f"v_cmp_lt_u32 s[{16+2*it}:{17+2*it}], v{t0}, v{DSC}")
    e("s_branch K2_HAVE")
    lab("K2_ROUND")
    e(f"v_lshrrev_b32 v{t2}, 3, v0"); e("s_movk_i32 s9, %d" % CHUNK); e(f"v_mul_lo_u32 v{t2}, v{t2}, s9")
    e(f"v_and_b32 v{t1}, 7, v0"); e(f"v_add_u32 v{t1}, s32, v{t1}")
    e(f"v_cmp_lt_u32 s[26:27], 31, v{DSC}")
    for it in range(4):
        e(f"v_add_u32 v{t0}, {8*it}, v{t1}")
        e(f"v_cmp_lt_u32 s[{16+2*it}:{17+2*it}], v{t0}, v{DSC+1}")
        e(f"s_and_b64 s[{16+2*it}:{17+2*it}], s[{16+2*it}:{17+2*it}], s[26:27]")
        e(f"v_add_lshl_u32 v{BS+it}, v{t2}, v{t0}, 4")
    for it in range(4):
        e(f"s_mov_b64 exec, s[{16+2*it}:{17+2*it}]")
        e(f"s_cbranch_execz K2_NOLD{it}")
        e(f"buffer_load_dwordx4 {vr(PB+4*it,4)}, v{BS+it}, s[44:47], 0 offen")
        lab(f"K2_NOLD{it}")
    e("s_mov_b64 exec, s[24:25]")
    e("s_add_u32 s32, s32, 32")
    e("s_waitcnt vmcnt(0) lgkmcnt(0)"); e("s_barrier")
    for it in range(4):
        e(f"v_cmp_eq_u32 vcc, s3, v{PB+4*it+2}")
        e(f"s_and_b64 s[{16+2*it}:{17+2*it}], s[{16+2*it}:{17+2*it}], vcc")
        e(f"v_mov_b32 v{CR+2*it}, v{PB+4*it}"); e(f"v_mov_b32 v{CR+2*it+1}, v{PB+4*it+1}")
    lab("K2_HAVE")
    e(f"v_cmp_lt_u32 vcc, 31, v{DSC}"); e(f"v_cmp_lt_u32 s[26:27], s32, v{DSC+1}"); e("s_and_b64 vcc, vcc, s[26:27]")
    e("s_and_saveexec_b64 s[26:27], vcc"); e("s_cbranch_execz K2_NOFLAG2")
    e(f"v_mov_b32 v{t0}, 1"); e(f"v_mov_b32 v{t1}, {FLAG_L}"); e(f"ds_write_b32 v{t1}, v{t0}")
    lab("K2_NOFLAG2")
    e("s_mov_b64 exec, s[24:25]")
    e(f"v_mov_b32 v{t0}, 1")
    for it in range(4):
        e(f"v_and_b32 v{DL+it}, 0xff, v{CR+2*it}"); e(f"v_subrev_u32 v{DL+it}, s4, v{DL+it}")
        e(f"v_cmp_gt_u32 vcc, 20, v{DL+it}")
        e(f"s_and_b64 s[{16+2*it}:{17+2*it}], s[{16+2*it}:{17+2*it}], vcc")
        e(f"v_lshlrev_b32 v{DL+it}, 2, v{DL+it}")
        e(f"v_lshlrev_b32 v{CR+2*it}, 1, v{CR+2*it}"); e(f"v_and_b32 v{CR+2*it}, 0xfffffe00, v{CR+2*it}")
    for it in range(4):
        e(f"s_mov_b64 exec, s[{16+2*it}:{17+2*it}]")
        e(f"ds_add_rtn_u32 v{RK+it}, v{DL+it}, v{t0} offset:{CNT_L}")
    e("s_mov_b64 exec, s[24:25]")
    e("s_cmp_lg_u32 s31, 0"); e("s_cbranch_scc1 K2_NOAU")
    e("s_waitcnt vmcnt(0)")
    e("s_cmp_ge_u32 s8, 5"); e("s_cbranch_scc1 K2_NOAL")
    e(f"ds_write_b128 v{FO}, {vr(AUR,4)} offset:{AL_L}"); e(f"ds_write_b128 v{FO}, {vr(AUR+4,4)} offset:{AL_L+16}")
    lab("K2_NOAL")
    e(f"v_and_b32 v{WC+3}, 0xffff0000, v{WC+1}"); e(f"v_lshlrev_b32 v{WC+2}, 16, v{WC+1}")
    e(f"v_and_b32 v{WC+1}, 0xffff0000, v{WC}"); e(f"v_lshlrev_b32 v{WC}, 16, v{WC}")
    for i in range(4): e(f"v_mul_f32 v{WC+i}, s29, v{WC+i}")
    lab("K2_NOAU")
    e("s_waitcnt lgkmcnt(0)"); e("s_barrier")
    stamp(2, 33, 26)
    e(f"v_and_b32 v{t1}, 31, v{LANE}"); e(f"v_lshlrev_b32 v{t1}, 2, v{t1}")
    e(f"ds_read_b32 v{t0}, v{t1} offset:{CNT_L}"); e(f"v_mov_b32 v{t2}, {FLAG_L}"); e(f"ds_read_b32 v{t2}, v{t2}")
    e(f"v_cmp_gt_u32 vcc, 32, v{LANE}")
    e("s_waitcnt lgkmcnt(0)")
    e(f"v_cndmask_b32 v{t0}, 0, v{t0}, vcc")
    e(f"v_add_u32 v{STP}, 1, v{t0}"); e(f"v_lshrrev_b32 v{STP}, 1, v{STP}"); e(f"v_mov_b32 v{INC}, v{STP}")
    e(f"v_readfirstlane_b32 s4, v{t2}") if False else None
    e(f"v_readfirstlane_b32 s6, v{t2}")
    wave_scan(INC)
    e(f"v_sub_u32 v{t1}, v{INC}, v{STP}")
    e(f"v_readlane_b32 s9, v{INC}, 63")
    for it in range(4): e(f"ds_bpermute_b32 v{BS+it}, v{DL+it}, v{t1}")
    e("s_waitcnt lgkmcnt(0)")
    for it in range(4):
        e(f"v_lshl_add_u32 v{BS+it}, v{BS+it}, 1, v{RK+it}"); e(f"v_lshlrev_b32 v{BS+it}, 3, v{BS+it}")
    for it in range(4):
        e(f"s_mov_b64 exec, s[{16+2*it}:{17+2*it}]")
        e(f"ds_write_b64 v{BS+it}, {vr(CR+2*it,2)} offset:{REC_L}")
    e("s_mov_b64 exec, s[24:25]")
    e("s_cmp_lg_u32 s8, 0"); e("s_cbranch_scc1 K2_NOPAD")
    e(f"v_lshl_add_u32 v{t1}, v{t1}, 1, v{t0}")
    e(f"v_and_b32 v{t2}, 1, v{t0}"); e(f"v_cmp_eq_u32 vcc, 1, v{t2}")
    e(f"v_mov_b32 v{RK}, {DUMMY_OFF}"); e(f"v_mov_b32 v{RK+1}, 0"); e(f"v_lshlrev_b32 v{DL}, 3, v{t1}")
    e("s_and_saveexec_b64 s[26:27], vcc"); e("s_cbranch_execz K2_NOPAD2")
    e(f"ds_write_b64 v{DL}, {vr(RK,2)} offset:{REC_L}")
    lab("K2_NOPAD2")
    e("s_mov_b64 exec, s[24:25]")
    lab("K2_NOPAD")
    e("s_mov_b32 s16, 0x3f80"); e("s_mov_b32 s18, 1.0"); e("s_mov_b32 s19, 1.0")
    e("s_waitcnt lgkmcnt(0)"); e("s_barrier")
    stamp(3, 33, 26)
    REPEAT = int(ENV("REPEAT", "0"))
    if REPEAT: e(f"s_mov_b32 s33, {REPEAT}"); lab("K2_REP")
    D = RING - 1
    e("s_mul_i32 s10, s9, s8"); e("s_lshr_b32 s10, s10, 4")
    e("s_add_u32 s11, s8, 1"); e("s_mul_i32 s11, s9, s11"); e("s_lshr_b32 s11, s11, 4")
    e("s_sub_u32 s12, s11, s10")
    e("s_mov_b32 s17, -1")
    e("s_cmp_eq_u32 s12, 0"); e("s_cbranch_scc1 K2_MEND")
    if ENV("NOMAIN"): e("s_branch K2_MEND")
    e(f"v_cmp_ge_u32 vcc, s10, v{INC}"); e("s_bcnt1_i32_b64 s13, vcc")
    e(f"v_readlane_b32 s14, v{INC}, s13"); e(f"v_readlane_b32 s11, v{STP}, s13")
    e("s_sub_u32 s14, s14, s10")
    e("s_lshl_b32 s20, s13, 10"); e(f"s_add_u32 s20, s20, {ACC_L}")
    e("s_mov_b32 s21, s31")
    e("s_cmp_eq_u32 s14, s11"); e("s_cbranch_scc1 K2_NOHEAD")
    e("s_mov_b32 s17, s13"); e("s_lshl_b32 s20, s8, 10"); e(f"s_add_u32 s20, s20, {HEAD_L}"); e("s_mov_b32 s21, 0")
    lab("K2_NOHEAD")
    e("s_min_u32 s14, s14, s12"); e("s_sub_u32 s15, s12, s14")
    e("s_sub_u32 s14, s14, 1")
    e(f"v_lshrrev_b32 v{RA}, 5, v{LANE}"); e(f"v_lshlrev_b32 v{RA}, 3, v{RA}")
    e("s_lshl_b32 s10, s10, 4"); e(f"s_add_u32 s10, s10, {REC_L}"); e(f"v_add_u32 v{RA}, s10, v{RA}")
    for k in range(RING): e(f"ds_read_b64 {vr(REC+2*k,2)}, v{RA} offset:{16*k}")
    e("s_lshl_b32 s10, s13, 9"); e(f"v_add_u32 v{VA}, s10, v{LO16}"); e(f"ds_read_b128 {vr(A,4)}, v{VA} offset:{AL_L}")
    for i in range(4): e(f"v_mov_b32 v{NUM+i}, 0"); e(f"v_mov_b32 v{DEN+i}, 0")
    e(f"v_add_u32 v{RA}, {16*RING}, v{RA}")
    e("s_waitcnt lgkmcnt(0)")
    for k in range(D):
        e(f"s_cmp_gt_u32 s12, {k}"); e("s_cselect_b32 s28, 0, s30")
        e(f"v_add_u32 v{VA}, v{REC+2*k}, v{LO16}")
        e(f"buffer_load_dwordx4 {vr(PB+4*k,4)}, v{VA}, s[64:67], s28 offen")
    e(f"s_max_u32 s12, s12, {D}"); e(f"s_sub_u32 s12, s12, {D}")
    e("s_lshl_b32 s12, s12, 0")
    for k in range(RING):
        lab(f"K2_L{k}")
        r = REC + 2*k; p = PB + 4*k; kn = (k + D) % RING
        e(f"v_pk_fma_f32 {vr(T,2)}, {vr(r,2)}, {vr(WC,2)}, {vr(A,2)} op_sel:[1,0,0] op_sel_hi:[1,1,1]")
        e(f"v_pk_fma_f32 {vr(T+2,2)}, {vr(r,2)}, {vr(WC+2,2)}, {vr(A+2,2)} op_sel:[1,0,0] op_sel_hi:[1,1,1]")
        e("s_sub_u32 s12, s12, 1"); e("s_cselect_b32 s28, s30, s28")
        e("s_waitcnt lgkmcnt(0)")
        e(f"v_add_u32 v{VA}, v{REC+2*kn}, v{LO16}")
        if not ENV("NOLOAD"): e(f"buffer_load_dwordx4 {vr(PB+4*kn,4)}, v{VA}, s[64:67], s28 offen")
        e(f"ds_read_b64 {vr(r,2)}, v{RA} offset:{16*k}")
        e(f"s_waitcnt vmcnt({D})")
        for i in range(4): e(f"v_dot2_f32_bf16 v{T+i}, v{p+i}, s16, v{T+i}")
        if not ENV("NOTRANS"):
            for i in range(4): e(f"v_exp_f32 v{T+i}, v{T+i}")
        e(f"v_pk_add_f32 {vr(T,2)}, {vr(T,2)}, s[18:19]"); e(f"v_pk_add_f32 {vr(T+2,2)}, {vr(T+2,2)}, s[18:19]")
        if not ENV("NOTRANS"):
            for i in range(4): e(f"v_rcp_f32 v{T+i}, v{T+i}")
        if k == RING - 1: e(f"v_add_u32 v{RA}, {16*RING}, v{RA}")
        e("s_sub_u32 s14, s14, 1")
        e(f"v_pk_add_f32 {vr(DEN,2)}, {vr(DEN,2)}, {vr(T,2)}")
        e(f"v_pk_fma_f32 {vr(NUM,2)}, {vr(T,2)}, {vr(p,2)}, {vr(NUM,2)}")
        e(f"v_pk_add_f32 {vr(DEN+2,2)}, {vr(DEN+2,2)}, {vr(T+2,2)}")
        e(f"v_pk_fma_f32 {vr(NUM+2,2)}, {vr(T+2,2)}, {vr(p+2,2)}, {vr(NUM+2,2)}")
        e(f"s_cbranch_scc0 K2_N{k}")
        e(f"s_movk_i32 s22, {(k+1) % RING}"); e("s_branch K2_FLUSH")
        lab(f"K2_N{k}")
    e("s_branch K2_L0")
    lab("K2_FLUSH")
    e("s_nop 0")
    e(f"v_permlane32_swap_b32 v{NUM}, v{NUM+1}"); e(f"v_permlane32_swap_b32 v{NUM+2}, v{NUM+3}")
    e(f"v_permlane32_swap_b32 v{DEN}, v{DEN+1}"); e(f"v_permlane32_swap_b32 v{DEN+2}, v{DEN+3}")
    e(f"v_add_u32 v{VA}, s20, v{AOFF}")
    e("s_nop 0")
    e(f"v_add_f32 v{NUM}, v{NUM}, v{NUM+1}"); e(f"v_add_f32 v{NUM+2}, v{NUM+2}, v{NUM+3}")
    e(f"v_add_f32 v{DEN}, v{DEN}, v{DEN+1}"); e(f"v_add_f32 v{DEN+2}, v{DEN+2}, v{DEN+3}")
    e("s_cmp_eq_u32 s21, 0"); e("s_cbranch_scc1 K2_FW")
    e(f"ds_read_b32 v{NUM+1}, v{VA}"); e(f"ds_read_b32 v{NUM+3}, v{VA} offset:8"); e(f"ds_read_b32 v{DEN+1}, v{VA} offset:512"); e(f"ds_read_b32 v{DEN+3}, v{VA} offset:520")
    e("s_waitcnt lgkmcnt(0)")
    e(f"v_add_f32 v{NUM}, v{NUM}, v{NUM+1}"); e(f"v_add_f32 v{NUM+2}, v{NUM+2}, v{NUM+3}")
    e(f"v_add_f32 v{DEN}, v{DEN}, v{DEN+1}"); e(f"v_add_f32 v{DEN+2}, v{DEN+2}, v{DEN+3}")
    lab("K2_FW")
    e(f"ds_write2_b32 v{VA}, v{NUM}, v{NUM+2} offset0:0 offset1:2"); e(f"ds_write2_b32 v{VA}, v{DEN}, v{DEN+2} offset0:128 offset1:130")
    e("s_cmp_eq_u32 s15, 0"); e("s_cbranch_scc1 K2_MEND")
    lab("K2_FN")
    e("s_add_u32 s13, s13, 1")
    e(f"v_readlane_b32 s14, v{STP}, s13")
    e("s_cmp_eq_u32 s14, 0"); e("s_cbranch_scc1 K2_FN")
    e("s_min_u32 s14, s14, s15"); e("s_sub_u32 s15, s15, s14"); e("s_sub_u32 s14, s14, 1")
    e("s_lshl_b32 s10, s13, 9"); e(f"v_add_u32 v{VA}, s10, v{LO16}"); e(f"ds_read_b128 {vr(A,4)}, v{VA} offset:{AL_L}")
    e("s_lshl_b32 s20, s13, 10"); e(f"s_add_u32 s20, s20, {ACC_L}"); e("s_mov_b32 s21, s31")
    for i in range(4): e(f"v_mov_b32 v{NUM+i}, 0"); e(f"v_mov_b32 v{DEN+i}, 0")
    e("s_waitcnt lgkmcnt(0)")
    for k in range(RING - 1):
        e(f"s_cmp_eq_u32 s22, {k}"); e(f"s_cbranch_scc1 K2_L{k}")
    e(f"s_branch K2_L{RING-1}")
    lab("K2_MEND")
    e("s_waitcnt vmcnt(0) lgkmcnt(0)")
    if REPEAT: e("s_sub_u32 s33, s33, 1"); e("s_cmp_lg_u32 s33, 0"); e("s_cbranch_scc1 K2_REP")
    e("s_lshl_b32 s10, s8, 2"); e(f"s_add_u32 s10, s10, {HID_L}"); e(f"v_mov_b32 v{t0}, s10"); e(f"v_mov_b32 v{t1}, s17")
    e(f"ds_write_b32 v{t0}, v{t1}")
    e("s_waitcnt lgkmcnt(0)")
    stamp(4, 33, 26)
    e("s_barrier")
    stamp(5, 33, 26)
    e("s_cmp_ge_u32 s8, 5"); e("s_cbranch_scc1 K2_FSKIP")
    FN, FD, HN, HD = REC, PB, PB + 8, NUM
    e(f"v_lshrrev_b32 v{t0}, 4, v0"); e(f"v_lshlrev_b32 v{t1}, 5, v0"); e(f"v_and_b32 v{t1}, 0x1e0, v{t1}")
    e(f"v_lshl_add_u32 v{t2}, v{t0}, 10, v{t1}")
    for hh in range(2):
        e(f"ds_read_b128 {vr(FN+4*hh,4)}, v{t2} offset:{ACC_L+16*hh}"); e(f"ds_read_b128 {vr(FD+4*hh,4)}, v{t2} offset:{ACC_L+512+16*hh}")
    e(f"v_and_b32 v{t3}, 15, v{LANE}"); e(f"v_lshlrev_b32 v{t3}, 2, v{t3}"); e(f"ds_read_b32 v{t3}, v{t3} offset:{HID_L}")
    e("s_waitcnt lgkmcnt(0)")
    e(f"v_lshrrev_b32 v{VA}, 2, v{t3}")
    e(f"v_cmp_eq_u32 vcc, s8, v{VA}")
    e("s_and_b32 s10, vcc_lo, 0xffff")
    lab("K2_FOLD")
    e("s_cmp_eq_u32 s10, 0"); e("s_cbranch_scc1 K2_FOLDED")
    e("s_ff1_i32_b32 s11, s10"); e("s_bitset0_b32 s10, s11")
    e(f"v_readlane_b32 s12, v{t3}, s11")
    e("s_lshl_b32 s13, s11, 10"); e(f"s_add_u32 s13, s13, {HEAD_L}"); e(f"v_add_u32 v{VA}, s13, v{t1}")
    for hh in range(2):
        e(f"ds_read_b128 {vr(HN+4*hh,4)}, v{VA} offset:{16*hh}"); e(f"ds_read_b128 {vr(HD+4*hh,4)}, v{VA} offset:{512+16*hh}")
    e("s_and_b32 s12, s12, 3"); e("s_lshl_b32 s12, s12, 4"); e("s_mov_b64 s[14:15], 0xffff"); e("s_lshl_b64 s[14:15], s[14:15], s12")
    e("s_waitcnt lgkmcnt(0)")
    e("s_mov_b64 exec, s[14:15]")
    for i in range(8): e(f"v_add_f32 v{FN+i}, v{FN+i}, v{HN+i}"); e(f"v_add_f32 v{FD+i}, v{FD+i}, v{HD+i}")
    e("s_mov_b64 exec, s[24:25]")
    e("s_branch K2_FOLD")
    lab("K2_FOLDED")
    e("s_cmp_eq_u32 s6, 0"); e("s_cbranch_scc1 K2_FIN")
    for hh in range(2):
        e(f"ds_write_b128 v{t2}, {vr(FN+4*hh,4)} offset:{ACC_L+16*hh}"); e(f"ds_write_b128 v{t2}, {vr(FD+4*hh,4)} offset:{ACC_L+512+16*hh}")
    e("s_cmp_ge_u32 s8, 1"); e("s_cbranch_scc1 K2_NR")
    e(f"v_lshlrev_b32 v{t0}, 2, v{LANE}"); e(f"v_mov_b32 v{t3}, 0"); e(f"ds_write_b32 v{t0}, v{t3}")
    e(f"v_mov_b32 v{t0}, {FLAG_L}"); e(f"ds_write_b32 v{t0}, v{t3}")
    e("s_branch K2_NR")
    lab("K2_FSKIP")
    e("s_cmp_eq_u32 s6, 0"); e("s_cbranch_scc1 K2_DONE")
    lab("K2_NR")
    e("s_mov_b32 s31, 1")
    e("s_branch K2_ROUND")
    lab("K2_FIN")
    U = HN; XU = HD
    for hh in range(2): e(f"ds_read_b128 {vr(U+4*hh,4)}, v{FO} offset:{AL_L+16*hh}")
    for i in range(4):
        e(f"v_lshlrev_b32 v{XU+2*i}, 16, v{X+i}"); e(f"v_and_b32 v{XU+2*i+1}, 0xffff0000, v{X+i}")
    e("s_mov_b32 s10, 0x358637bd")
    for i in range(8): e(f"v_add_f32 v{FD+i}, s10, v{FD+i}")
    for i in range(8): e(f"v_rcp_f32 v{FD+i}, v{FD+i}")
    e("s_waitcnt lgkmcnt(0)")
    for i in range(8): e(f"v_lshlrev_b32 v{U+i}, 16, v{U+i}")
    for i in range(8): e(f"v_fma_f32 v{FN+i}, v{FN+i}, v{FD+i}, v{U+i}")
    for i in range(8):
        e(f"v_mul_f32 v{FD+i}, 0, v{FN+i}")
        e(f"v_cmp_gt_f32 vcc, v{FN+i}, 0")
        e("s_nop 1")
        e(f"v_cndmask_b32 v{FN+i}, v{FD+i}, v{FN+i}, vcc")
        e(f"v_add_f32 v{FN+i}, v{FN+i}, v{XU+i}")
    for i in range(4): e(f"v_cvt_pk_bf16_f32 v{T+i}, v{FN+2*i}, v{FN+2*i+1}")
    e(f"v_lshlrev_b32 v{t3}, 4, v0")
    e(f"buffer_store_dwordx4 {vr(T,4)}, v{t3}, s[60:63], 0 offen")
    lab("K2_DONE")
    if STAMPS:
        e("s_waitcnt vmcnt(0)")
        stamp(6, 33, 26)
        stamp_flush(7, 33, 4, 1, 16, 40)
    lab("K2_END")
    e("s_endpgm")
    return NV

def kd(name, vgpr, sgpr):
    return f""".p2align 6
.amdhsa_kernel {name}
  .amdhsa_next_free_vgpr {vgpr}
  .amdhsa_next_free_sgpr {sgpr}
  .amdhsa_accum_offset {(vgpr + 3) // 4 * 4}
  .amdhsa_group_segment_fixed_size 0
  .amdhsa_kernarg_size 96
  .amdhsa_user_sgpr_count 2
  .amdhsa_user_sgpr_kernarg_segment_ptr 1
  .amdhsa_system_sgpr_workgroup_id_x 1
.end_amdhsa_kernel
"""

hdr = open("cdna_kernels/" + NAME + ".s.ref").read().split("; Override launch geometry")[0]
gen_k1(); nv = gen_k2()
out = hdr
out += "; @launch kernel=k1_kernel grid=(381,1,1) block=(256,1,1) lds=67584\n"
out += f"; @launch kernel=k2_kernel grid=(512,1,1) block=(1024,1,1) lds={K2_LDS}\n"
out += '.amdgcn_target "amdgcn-amd-amdhsa--gfx950"\n.text\n'
out += "\n".join(L) + "\n"
out += '.section .rodata,"a"\n' + kd("k1_kernel", 256, 96) + kd("k2_kernel", nv, 72)
dst = sys.argv[1] if len(sys.argv) > 1 else "cdna_kernels/" + NAME + ".s"
open(dst, "w").write(out)
print("wrote", dst, len(L), "lines; K2 LDS", K2_LDS, "vgpr", nv)
```

```python
import sys, os
N = 10000; E = 320000
NAME = "gather_scatter__edge_featured_mpnn_gatedgcn__graph"
T_OFF = 0
AU_OFF = 1256 * 4096
CELL_OFF = AU_OFF + 1250 * 4096
CELL_BYTES = 512 * 128 * 256
REC_OFF = CELL_OFF + CELL_BYTES
P = 125; CHUNK = 2560
REC_BYTES = P * CHUNK * 16
NL2E = 0xbfb8aa3b
BIG = 0x40000000
DUMMY_OFF = 10000 * 512
ENV = os.environ.get
STAMPS = ENV("STAMPS") == "1"
STAMP_OFF = 32 << 20
STT = ENV("STT", "nt"); STT = (" " + STT) if STT else ""
STR = ENV("STR", ""); STR = (" " + STR) if STR else ""
RING = int(ENV("RING", "4"))

L = []
def e(s): L.append("    " + s)
def lab(s): L.append(s + ":")
def vr(a, n): return f"v[{a}:{a+n-1}]"

def srd(s, lo, hi, size, add=None):
    if add is None:
        e(f"s_mov_b32 s{s}, s{lo}"); e(f"s_and_b32 s{s+1}, s{hi}, 0xffff")
    else:
        adds = add if isinstance(add, list) else [add]
        e(f"s_add_u32 s{s}, s{lo}, {adds[0]}"); e(f"s_addc_u32 s{s+1}, s{hi}, 0")
        for a in adds[1:]:
            e(f"s_add_u32 s{s}, s{s}, {a}"); e(f"s_addc_u32 s{s+1}, s{s+1}, 0")
        e(f"s_and_b32 s{s+1}, s{s+1}, 0xffff")
    e(f"s_mov_b32 s{s+2}, {size}"); e(f"s_mov_b32 s{s+3}, 0x20000")

def stamp(idx, sbase, tmp):
    if not STAMPS: return
    e(f"s_memrealtime s[{tmp}:{tmp+1}]"); e("s_waitcnt lgkmcnt(0)"); e(f"s_mov_b32 s{sbase+idx}, s{tmp}")
def stamp_flush(n, sbase, vS, kern, nwaves, sq):
    if not STAMPS: return
    e(f"v_mov_b32 v{vS}, 0")
    for i in range(n): e(f"v_writelane_b32 v{vS}, s{sbase+i}, {i}")
    e(f"s_load_dwordx2 s[{sq}:{sq+1}], s[0:1], 88"); e("s_waitcnt lgkmcnt(0)")
    e(f"s_add_u32 s{sq}, s{sq}, {STAMP_OFF + kern * (4 << 20)}"); e(f"s_addc_u32 s{sq+1}, s{sq+1}, 0"); e(f"s_and_b32 s{sq+1}, s{sq+1}, 0xffff")
    e(f"s_mov_b32 s{sq+2}, 0x400000"); e(f"s_mov_b32 s{sq+3}, 0x20000")
    e(f"v_lshrrev_b32 v{vS+1}, 6, v0"); e("s_nop 0"); e(f"v_readfirstlane_b32 s{sq+4}, v{vS+1}")
    e(f"s_mul_i32 s{sq+5}, s2, {nwaves}"); e(f"s_add_u32 s{sq+4}, s{sq+4}, s{sq+5}"); e(f"s_lshl_b32 s{sq+4}, s{sq+4}, 8")
    e(f"v_and_b32 v{vS+1}, 63, v0"); e(f"v_lshlrev_b32 v{vS+1}, 2, v{vS+1}")
    e(f"buffer_store_dword v{vS}, v{vS+1}, s[{sq}:{sq+3}], s{sq+4} offen")

def wave_scan(v):
    for sh in (1, 2, 4, 8):
        e("s_nop 1")
        e(f"v_add_u32_dpp v{v}, v{v}, v{v} row_shr:{sh} row_mask:0xf bank_mask:0xf bound_ctrl:0")
    e("s_nop 1")
    e(f"v_add_u32_dpp v{v}, v{v}, v{v} row_bcast:15 row_mask:0xa bank_mask:0xf")
    e("s_nop 1")
    e(f"v_add_u32_dpp v{v}, v{v}, v{v} row_bcast:31 row_mask:0xc bank_mask:0xf")
    e("s_nop 1")

def load_kernargs():
    e("s_load_dwordx16 s[16:31], s[0:1], 0")
    e("s_load_dwordx8 s[32:39], s[0:1], 64")

def gen_k1():
    NG = 256
    L.append(".p2align 8"); L.append(".globl k1_kernel"); L.append(".type k1_kernel,@function"); lab("k1_kernel")
    e(f"s_cmp_ge_u32 s2, {NG + P}"); e("s_cbranch_scc1 K1_END2")
    load_kernargs()
    if STAMPS:
        for i in range(12): e(f"s_mov_b32 s{70+i}, 0")
    stamp(0, 70, 90)
    e(f"s_cmp_lt_u32 s2, {NG}"); e("s_cbranch_scc1 K1_G")
    lab("K1_PART")
    if ENV("NOP"): e("s_branch K1_END")
    e(f"s_sub_u32 s3, s2, {NG}")
    CEL, CNT, OVC = 0, 65536, 65536 + 2048
    e("v_lshlrev_b32 v1, 4, v0"); e("v_lshlrev_b32 v2, 2, v0"); e("v_lshlrev_b32 v7, 3, v0")
    e("v_mov_b32 v4, 0"); e("v_mov_b32 v5, 1"); e(f"v_add_u32 v3, {CNT}, v7"); e("v_mov_b32 v8, 0"); e("v_mov_b32 v9, 0")
    e("ds_write_b64 v3, v[8:9]"); e(f"v_mov_b32 v6, {OVC}"); e("ds_write_b32 v6, v4")
    e("s_mul_i32 s4, s3, 10240"); e("s_add_u32 s5, s4, 4096"); e("s_add_u32 s6, s4, 8192")
    e("s_mul_i32 s7, s3, 5120"); e("s_add_u32 s8, s7, 4096")
    e("s_waitcnt lgkmcnt(0)")
    e("s_barrier")
    DS, SS, ES, BK, AD, RK = 10, 20, 30, 40, 50, 60
    srd(40, 22, 23, E * 4)
    e(f"buffer_load_dwordx4 {vr(DS,4)}, v1, s[40:43], s4 offen"); e(f"buffer_load_dwordx4 {vr(DS+4,4)}, v1, s[40:43], s5 offen")
    e(f"buffer_load_dwordx2 {vr(DS+8,2)}, v7, s[40:43], s6 offen")
    srd(44, 20, 21, E * 4)
    e(f"buffer_load_dwordx4 {vr(SS,4)}, v1, s[44:47], s4 offen"); e(f"buffer_load_dwordx4 {vr(SS+4,4)}, v1, s[44:47], s5 offen")
    e(f"buffer_load_dwordx2 {vr(SS+8,2)}, v7, s[44:47], s6 offen")
    srd(48, 18, 19, E * 2)
    e(f"buffer_load_dwordx2 {vr(ES,2)}, v7, s[48:51], s7 offen"); e(f"buffer_load_dwordx2 {vr(ES+2,2)}, v7, s[48:51], s7 offen offset:2048")
    e(f"buffer_load_dword v{ES+4}, v2, s[48:51], s8 offen")
    srd(52, 38, 39, CELL_BYTES, add=CELL_OFF)
    srd(60, 38, 39, REC_BYTES, add=REC_OFF)
    e("s_mov_b32 s9, 219902336"); e("s_movk_i32 s10, 625")
    stamp(1, 70, 90)
    e("s_waitcnt vmcnt(6)")
    stamp(2, 70, 90)
    for k in range(10):
        e(f"v_mul_hi_u32 v{BK+k}, v{DS+k}, s9")
        e(f"v_lshl_add_u32 v{AD+k}, v{BK+k}, 2, v3") if False else None
        e(f"v_lshlrev_b32 v{AD+k}, 2, v{BK+k}"); e(f"v_add_u32 v{AD+k}, {CNT}, v{AD+k}")
        e(f"ds_add_rtn_u32 v{RK+k}, v{AD+k}, v5")
    for k in range(10):
        e(f"v_mul_lo_u32 v{AD+k}, v{BK+k}, s10")
        e(f"v_add_u32 v{AD+k}, 31, v{AD+k}")
        e(f"v_lshrrev_b32 v{AD+k}, 5, v{AD+k}")
        e(f"v_sub_u32 v{DS+k}, v{DS+k}, v{AD+k}")
    e("s_waitcnt vmcnt(0)")
    stamp(3, 70, 90)
    for k in range(10):
        j = k >> 1
        e(f"v_lshl_or_b32 v{84+2*k}, v{SS+k}, 8, v{DS+k}")
        if k & 1: e(f"v_and_b32 v{85+2*k}, 0xffff0000, v{ES+j}")
        else: e(f"v_lshlrev_b32 v{85+2*k}, 16, v{ES+j}")
    e("s_mov_b64 s[22:23], exec"); e("s_mov_b64 s[20:21], 0")
    e("s_waitcnt lgkmcnt(0)")
    for k in range(10):
        e(f"v_lshlrev_b32 v{AD+k}, 7, v{BK+k}"); e(f"v_lshl_add_u32 v{AD+k}, v{RK+k}, 3, v{AD+k}")
        e(f"v_cmp_gt_u32 vcc, 15, v{RK+k}")
        e("s_andn2_b64 s[24:25], exec, vcc"); e("s_or_b64 s[20:21], s[20:21], s[24:25]")
        e("s_mov_b64 exec, vcc")
        e(f"ds_write_b64 v{AD+k}, {vr(84+2*k,2)} offset:8")
        e("s_mov_b64 exec, s[22:23]")
    e("s_cmp_eq_u64 s[20:21], 0"); e("s_cbranch_scc1 K1_NOOVF")
    e("s_mul_i32 s11, s3, %d" % (CHUNK * 16)); e("s_lshl_b32 s12, s3, 7"); e("s_add_u32 s12, s12, %d" % (16384 - 15 * 8))
    for k in range(10):
        e(f"v_cmp_le_u32 vcc, 15, v{RK+k}"); e(f"v_cmp_gt_u32 s[24:25], 31, v{RK+k}"); e("s_and_b64 s[26:27], vcc, s[24:25]")
        e("s_mov_b64 exec, s[26:27]"); e(f"s_cbranch_execz K1_OW{k}")
        e(f"v_lshlrev_b32 v70, 15, v{BK+k}"); e(f"v_lshl_add_u32 v70, v{RK+k}, 3, v70")
        e(f"buffer_store_dwordx2 {vr(84+2*k,2)}, v70, s[52:55], s12 offen")
        lab(f"K1_OW{k}")
        e("s_andn2_b64 exec, s[22:23], s[24:25]"); e(f"s_cbranch_execz K1_OV{k}")
        e(f"ds_add_rtn_u32 v70, v6, v5")
        e(f"v_mov_b32 v72, v{84+2*k}"); e(f"v_mov_b32 v73, v{85+2*k}"); e(f"v_mov_b32 v74, v{BK+k}"); e("v_mov_b32 v75, 0")
        e("s_waitcnt lgkmcnt(0)")
        e("v_lshlrev_b32 v70, 4, v70")
        e("buffer_store_dwordx4 v[72:75], v70, s[60:63], s11 offen")
        lab(f"K1_OV{k}")
        e("s_mov_b64 exec, s[22:23]")
    lab("K1_NOOVF")
    e("s_waitcnt lgkmcnt(0)"); e("s_barrier")
    stamp(5, 70, 90)
    e("v_lshrrev_b32 v12, 3, v0"); e("v_and_b32 v13, 7, v0")
    e(f"v_lshlrev_b32 v14, 2, v12"); e(f"v_add_u32 v14, {CNT}, v14")
    e("v_lshlrev_b32 v16, 4, v0")
    e("v_lshlrev_b32 v15, 15, v12"); e("v_lshl_add_u32 v15, v13, 4, v15")
    e("s_lshl_b32 s11, s3, 7")
    e("ds_read_b32 v17, v6")
    e("v_cmp_eq_u32 s[24:25], 0, v13")
    e("v_lshlrev_b32 v13, 1, v13")
    for half in range(2):
        for ps in range(8): e(f"ds_read_b32 v{20+ps}, v14 offset:{(half*8+ps)*128}")
        for ps in range(8): e(f"ds_read_b128 {vr(40+4*ps,4)}, v16 offset:{(half*8+ps)*4096}")
        for ps in range(8):
            e(f"s_waitcnt lgkmcnt({7-ps})")
            e(f"v_cndmask_b32 v{40+4*ps}, v{40+4*ps}, v{20+ps}, s[24:25]"); e(f"v_cndmask_b32 v{41+4*ps}, v{41+4*ps}, v17, s[24:25]")
            e(f"v_cmp_le_u32 vcc, v13, v{20+ps}")
            e("s_mov_b64 exec, vcc")
            e(f"buffer_store_dwordx4 {vr(40+4*ps,4)}, v15, s[52:55], s11 offen" + STR)
            e("s_mov_b64 exec, s[22:23]")
            e(f"s_add_u32 s11, s11, {32*32768}")
        if half == 0: e("s_nop 1")
    e("s_branch K1_END")
    lab("K1_G")
    if ENV("NOG"): e("s_branch K1_END")
    e("v_and_b32 v1, 63, v0"); e("v_lshrrev_b32 v2, 6, v0"); e("v_and_b32 v3, 15, v1"); e("v_readfirstlane_b32 s3, v2")
    e("v_lshrrev_b32 v4, 4, v1")
    e("s_and_b32 s4, s2, 1")
    e("s_lshr_b32 s5, s2, 1"); e("s_and_b32 s5, s5, 1")
    e("s_lshr_b32 s6, s2, 2"); e("s_sub_u32 s6, 63, s6")
    e("v_lshlrev_b32 v5, 11, v4"); e("v_lshl_add_u32 v5, v3, 3, v5")
    e("v_lshlrev_b32 v6, 8, v3"); e("v_lshl_add_u32 v6, v4, 4, v6")
    e("v_lshlrev_b32 v8, 4, v1")
    e("v_lshlrev_b32 v7, 11, v4"); e("v_lshl_add_u32 v7, v3, 4, v7")
    e("s_lshl_b32 s7, s6, 2"); e("s_add_u32 s7, s7, s3")
    e("s_lshl_b32 s8, s7, 12")
    e(f"s_add_u32 s9, s8, {256*4096}")
    e(f"s_add_u32 s10, s8, {512*4096}")
    e("s_lshl_b32 s11, s3, 13"); e("s_lshl_b32 s12, s4, 7"); e("s_add_u32 s11, s11, s12")
    e("s_waitcnt lgkmcnt(0)")
    XA, XB, LW, F, ACC, WF = 32, 48, 64, 96, 96, 128
    e("s_cmp_eq_u32 s5, 0")
    e("s_cselect_b32 s44, s26, s30"); e("s_cselect_b32 s45, s27, s31"); e("s_cselect_b32 s48, s32, s24"); e("s_cselect_b32 s49, s33, s25")
    e(f"s_mov_b32 s60, {NL2E:#x}")
    e("s_cselect_b32 s63, s60, 1.0"); e("s_cselect_b32 s64, 1.0, s60")
    e(f"s_mov_b32 s12, {AU_OFF}"); e("s_cselect_b32 s12, 0, s12")
    e("s_and_b32 s45, s45, 0xffff"); e("s_and_b32 s49, s49, 0xffff")
    e("s_mov_b32 s46, 32768"); e("s_mov_b32 s47, 0x20000"); e("s_mov_b32 s50, 32768"); e("s_mov_b32 s51, 0x20000")
    for m in range(2):
        for i in range(8):
            e(f"buffer_load_dwordx2 {vr(LW+16*m+2*i,2)}, v5, s[{44+4*m}:{47+4*m}], s11 offen offset:{i*256}")
    srd(40, 16, 17, N * 256)
    for kk in range(4): e(f"buffer_load_dwordx4 {vr(XA+4*kk,4)}, v6, s[40:43], s8 offen offset:{kk*64}")
    for kk in range(4): e(f"buffer_load_dwordx4 {vr(XB+4*kk,4)}, v6, s[40:43], s9 offen offset:{kk*64}")
    e("s_mov_b32 s13, 0x05040100"); e("s_mov_b32 s14, 0x07060302")
    e("s_mov_b32 s61, 0xffff0000"); e("s_mov_b32 s62, 0x80000000")
    e("s_lshl_b32 s15, s3, 12"); e("v_add_u32 v9, s15, v8")
    e("s_lshl_b32 s15, s4, 8")
    srd(52, 38, 39, 10001 * 512 - 256, add=["s12", "s15"])
    stamp(1, 70, 90)
    for m in range(2):
        e(f"s_waitcnt vmcnt({16 if m == 0 else 8})")
        for cc in range(4):
            for jj in range(4):
                lo = LW + 16*m + 2*(2*jj) + (cc >> 1); hi = LW + 16*m + 2*(2*jj+1) + (cc >> 1)
                e(f"v_perm_b32 v{F+4*cc+jj}, v{hi}, v{lo}, s{13 + (cc & 1)}")
            e(f"ds_write_b128 v9, {vr(F+4*cc,4)} offset:{m*16384 + cc*1024}")
    stamp(2, 70, 90)
    e("s_waitcnt lgkmcnt(0)"); e("s_barrier")
    for f in range(32):
        e(f"ds_read_b128 {vr(WF+4*f,4)}, v8 offset:{f*1024}")
    e("s_or_b32 s12, s7, s5"); e("s_cmp_eq_u32 s12, 0"); e("s_cbranch_scc0 K1_NODUMMY")
    e("v_mov_b32 v10, 0x7f80"); e("v_lshlrev_b32 v11, 2, v1")
    e(f"s_mov_b32 s12, {DUMMY_OFF}")
    e("buffer_store_dword v10, v11, s[52:55], s12 offen")
    lab("K1_NODUMMY")
    e("s_waitcnt vmcnt(0) lgkmcnt(0)")
    stamp(3, 70, 90)
    lab("K1_TILE")
    for kk in range(4):
        for m in range(2):
            for cc in range(4):
                a = ACC + 4*(m*4+cc); w = WF + 4*((m*4+kk)*4+cc)
                src = "0" if kk == 0 else vr(a,4)
                e(f"v_mfma_f32_16x16x32_bf16 {vr(a,4)}, {vr(XA+4*kk,4)}, {vr(w,4)}, {src}")
    e("s_waitcnt vmcnt(4)")
    for i in range(16): e(f"v_mov_b32 v{XA+i}, v{XB+i}")
    for kk in range(4): e(f"buffer_load_dwordx4 {vr(XB+4*kk,4)}, v6, s[40:43], s10 offen offset:{kk*64}")
    e("s_lshl_b32 s12, s8, 1")
    for r in range(4):
        for cc in range(4):
            b = ACC + 4*cc + r; hv = ACC + 16 + 4*cc + r; p = 64 + 4*r + cc; t1 = 80 + (cc & 1) * 4; t2 = t1 + 1; t3 = t1 + 2
            e(f"v_mul_f32 v{t1}, s63, v{b}")
            e(f"v_mul_f32 v{t3}, s64, v{hv}")
            e(f"v_cvt_pk_bf16_f32 v{t2}, v{t1}, 0")
            e(f"v_and_b32 v{p}, 0x7fffffff, v{t3}")
            e(f"v_add_u32 v{p}, 0x8000, v{p}")
            e(f"v_sub_u32 v{p}, v{p}, v{t2}")
            e(f"v_max_i32 v{p}, 0, v{p}")
            e(f"v_and_or_b32 v{p}, v{p}, s61, v{t2}")
            e(f"v_and_or_b32 v{p}, v{t3}, s62, v{p}")
        e(f"buffer_store_dwordx4 {vr(64+4*r,4)}, v7, s[52:55], s12 offen offset:{r*512}" + STT)
    e("s_cmp_lt_u32 s9, %d" % (625 * 4096)); e("s_mov_b32 s8, s9"); e("s_mov_b32 s9, s10"); e(f"s_mov_b32 s10, {BIG:#x}")
    e("s_cbranch_scc1 K1_TILE")
    e("s_branch K1_END")
    lab("K1_END")
    if ENV("DELAY"):
        e("s_memrealtime s[90:91]"); e("s_waitcnt lgkmcnt(0)"); e(f"s_add_u32 s92, s90, {ENV('DELAY')}")
        lab("K1_DLY")
        e("s_memrealtime s[90:91]"); e("s_waitcnt lgkmcnt(0)"); e("s_sub_u32 s93, s92, s90"); e("s_cmp_gt_i32 s93, 0"); e("s_cbranch_scc1 K1_DLY")
    if STAMPS:
        stamp(6, 70, 90)
        e("s_waitcnt vmcnt(0)")
        stamp(8, 70, 90)
        stamp_flush(12, 70, 1, 0, 4, 84)
    lab("K1_END2")
    e("s_endpgm")

CNT_L = 0; FLAG_L = 256; HID_L = 320; ACC_L = 512; AL_L = ACC_L + 20 * 1024; REC_L = AL_L + 20 * 512; HEAD_L = REC_L + (3875 + 32) * 8 + 264
K2_LDS = HEAD_L + 16 * 1024
def gen_k2():
    L.append(".p2align 8"); L.append(".globl k2_kernel"); L.append(".type k2_kernel,@function"); lab("k2_kernel")
    e("s_cmp_ge_u32 s2, 512"); e("s_cbranch_scc1 K2_END")
    load_kernargs()
    LO16, RA, LANE, WC, A, NUM, DEN, T, VA, STP, INC, AOFF = 1, 2, 3, 4, 8, 12, 16, 20, 24, 25, 26, 27
    X, DSC = 28, 32
    assert RING == 4
    REC = 34; PB = 42
    t0, t1, t2, t3, FO = 58, 59, 60, 61, 62
    NV = 64
    e("s_mov_b32 s3, s2")
    e("s_mul_i32 s6, s3, 625"); e("s_add_u32 s6, s6, 31"); e("s_lshr_b32 s5, s6, 5"); e("s_add_u32 s6, s6, 625"); e("s_lshr_b32 s6, s6, 5")
    e("s_sub_u32 s7, s6, s5")
    e(f"v_and_b32 v{LANE}, 63, v0"); e(f"v_lshrrev_b32 v{t0}, 6, v0"); e(f"v_and_b32 v{t1}, 31, v0"); e(f"v_readfirstlane_b32 s8, v{t0}")
    e(f"v_lshlrev_b32 v{LO16}, 4, v{t1}")
    if STAMPS: e("s_memrealtime s[70:71]"); e("s_waitcnt lgkmcnt(0)"); e("s_mov_b32 s15, s70")
    e(f"v_lshlrev_b32 v{VA}, 4, v0")
    e(f"v_lshlrev_b32 v{FO}, 5, v0")
    e(f"v_lshlrev_b32 v{t3}, 4, v0")
    for i in range(4): e(f"v_mov_b32 v{T+i}, 0")
    e(f"ds_write_b128 v{t3}, {vr(T,4)} offset:{ACC_L}")
    e("s_cmp_ge_u32 s8, 4"); e("s_cbranch_scc1 K2_Z1")
    e(f"ds_write_b128 v{t3}, {vr(T,4)} offset:{ACC_L+16384}")
    e("s_cmp_ge_u32 s8, 2"); e("s_cbranch_scc1 K2_Z1")
    e(f"v_lshlrev_b32 v{t2}, 2, v0"); e(f"ds_write_b32 v{t2}, v{T}")
    lab("K2_Z1")
    e("s_waitcnt lgkmcnt(0)")
    e("s_lshl_b32 s10, s3, 15"); srd(40, 38, 39, 32768, add=[CELL_OFF, "s10"])
    CR = REC; AUR = PB + 8
    e(f"buffer_load_dwordx4 {vr(CR,4)}, v{VA}, s[40:43], 0 offen")
    e("s_barrier")
    srd(68, 28, 29, 256)
    e(f"v_lshrrev_b32 v{t2}, 1, v{LO16}"); e(f"buffer_load_dwordx2 {vr(WC,2)}, v{t2}, s[68:71], 0 offen")
    e("s_lshl_b32 s9, s5, 9"); e("s_lshl_b32 s12, s7, 9"); srd(48, 38, 39, "s12", add=[AU_OFF, "s9"])
    e("s_lshl_b32 s9, s5, 8"); e("s_lshl_b32 s12, s7, 8")
    srd(52, 16, 17, "s12", add=["s9"]); srd(60, 34, 35, "s12", add=["s9"])
    e("s_cmp_ge_u32 s8, 5"); e("s_cbranch_scc1 K2_NOAU0")
    e(f"buffer_load_dwordx4 {vr(AUR,4)}, v{FO}, s[48:51], 0 offen"); e(f"buffer_load_dwordx4 {vr(AUR+4,4)}, v{FO}, s[48:51], 0 offen offset:16")
    lab("K2_NOAU0")
    srd(44, 38, 39, REC_BYTES, add=REC_OFF)
    srd(64, 38, 39, 10001 * 512)
    e(f"s_mov_b32 s29, {NL2E:#x}"); e(f"s_mov_b32 s30, {BIG:#x}"); e("s_mov_b32 s31, 0"); e("s_mov_b32 s32, 0")
    e("s_mov_b64 s[24:25], exec")
    if STAMPS:
        e("s_mov_b32 s33, s15")
        for i in range(1, 7): e(f"s_mov_b32 s{33+i}, 0")
    e(f"v_lshrrev_b32 v{t2}, 5, v{LANE}"); e(f"v_lshl_add_u32 v{AOFF}, v{t2}, 2, v{LO16}")
    e("s_cmp_ge_u32 s8, 5"); e("s_cbranch_scc1 K2_W1"); e("s_waitcnt vmcnt(3)"); e("s_branch K2_W2")
    lab("K2_W1"); e("s_waitcnt vmcnt(1)"); lab("K2_W2")
    stamp(1, 33, 26)
    e(f"v_mov_b32_dpp v{DSC}, v{CR} quad_perm:[0,0,0,0] row_mask:0xf bank_mask:0xf"); e(f"v_mov_b32_dpp v{DSC+1}, v{CR+1} quad_perm:[0,0,0,0] row_mask:0xf bank_mask:0xf")
    e("s_nop 1")
    e(f"v_mov_b32_dpp v{DSC}, v{DSC} row_shr:4 row_mask:0xf bank_mask:0xa"); e(f"v_mov_b32_dpp v{DSC+1}, v{DSC+1} row_shr:4 row_mask:0xf bank_mask:0xa")
    e("v_cmp_gt_u32 vcc, %d, v0" % (P * 8)); e("s_nop 1"); e(f"v_cndmask_b32 v{DSC}, 0, v{DSC}, vcc")
    e(f"v_cmp_lt_u32 vcc, 15, v{DSC}")
    e("s_and_saveexec_b64 s[26:27], vcc"); e("s_cbranch_execz K2_NOL2")
    e("s_mov_b32 s10, 0x4000")
    e(f"buffer_load_dwordx4 {vr(CR+4,4)}, v{VA}, s[40:43], s10 offen")
    e("s_waitcnt vmcnt(0)")
    lab("K2_NOL2")
    e("s_mov_b64 exec, s[24:25]")
    e(f"v_and_b32 v{t1}, 7, v0"); e(f"v_lshlrev_b32 v{t1}, 1, v{t1}")
    RK, DL, BS = PB, PB + 4, NUM
    for it in range(4):
        ri = (-1, 0, 15, 16)[it]
        e(f"v_add_u32 v{t0}, {ri}, v{t1}")
        e(f"v_cmp_lt_u32 s[{16+2*it}:{17+2*it}], v{t0}, v{DSC}")
    e("s_branch K2_HAVE")
    lab("K2_ROUND")
    e(f"v_lshrrev_b32 v{t2}, 3, v0"); e("s_movk_i32 s9, %d" % CHUNK); e(f"v_mul_lo_u32 v{t2}, v{t2}, s9")
    e(f"v_and_b32 v{t1}, 7, v0"); e(f"v_add_u32 v{t1}, s32, v{t1}")
    e(f"v_cmp_lt_u32 s[26:27], 31, v{DSC}")
    for it in range(4):
        e(f"v_add_u32 v{t0}, {8*it}, v{t1}")
        e(f"v_cmp_lt_u32 s[{16+2*it}:{17+2*it}], v{t0}, v{DSC+1}")
        e(f"s_and_b64 s[{16+2*it}:{17+2*it}], s[{16+2*it}:{17+2*it}], s[26:27]")
        e(f"v_add_lshl_u32 v{BS+it}, v{t2}, v{t0}, 4")
    for it in range(4):
        e(f"s_mov_b64 exec, s[{16+2*it}:{17+2*it}]")
        e(f"s_cbranch_execz K2_NOLD{it}")
        e(f"buffer_load_dwordx4 {vr(PB+4*it,4)}, v{BS+it}, s[44:47], 0 offen")
        lab(f"K2_NOLD{it}")
    e("s_mov_b64 exec, s[24:25]")
    e("s_add_u32 s32, s32, 32")
    e("s_waitcnt vmcnt(0) lgkmcnt(0)"); e("s_barrier")
    for it in range(4):
        e(f"v_cmp_eq_u32 vcc, s3, v{PB+4*it+2}")
        e(f"s_and_b64 s[{16+2*it}:{17+2*it}], s[{16+2*it}:{17+2*it}], vcc")
        e(f"v_mov_b32 v{CR+2*it}, v{PB+4*it}"); e(f"v_mov_b32 v{CR+2*it+1}, v{PB+4*it+1}")
    lab("K2_HAVE")
    e(f"v_cmp_lt_u32 vcc, 31, v{DSC}"); e(f"v_cmp_lt_u32 s[26:27], s32, v{DSC+1}"); e("s_and_b64 vcc, vcc, s[26:27]")
    e("s_and_saveexec_b64 s[26:27], vcc"); e("s_cbranch_execz K2_NOFLAG2")
    e(f"v_mov_b32 v{t0}, 1"); e(f"v_mov_b32 v{t1}, {FLAG_L}"); e(f"ds_write_b32 v{t1}, v{t0}")
    lab("K2_NOFLAG2")
    e("s_mov_b64 exec, s[24:25]")
    e(f"v_mov_b32 v{t0}, 1")
    for it in range(4):
        e(f"v_and_b32 v{DL+it}, 0xff, v{CR+2*it}")
        e(f"v_lshlrev_b32 v{DL+it}, 2, v{DL+it}")
        e(f"v_lshlrev_b32 v{CR+2*it}, 1, v{CR+2*it}"); e(f"v_and_b32 v{CR+2*it}, 0xfffffe00, v{CR+2*it}")
    for it in range(4):
        e(f"s_mov_b64 exec, s[{16+2*it}:{17+2*it}]")
        e(f"ds_add_rtn_u32 v{RK+it}, v{DL+it}, v{t0} offset:{CNT_L}")
    e("s_mov_b64 exec, s[24:25]")
    e("s_waitcnt lgkmcnt(0)"); e("s_barrier")
    stamp(2, 33, 26)
    e(f"v_and_b32 v{t1}, 31, v{LANE}"); e(f"v_lshlrev_b32 v{t1}, 2, v{t1}")
    e(f"ds_read_b32 v{t0}, v{t1} offset:{CNT_L}"); e(f"v_mov_b32 v{t2}, {FLAG_L}"); e(f"ds_read_b32 v{t2}, v{t2}")
    e(f"v_cmp_gt_u32 vcc, 32, v{LANE}")
    e("s_waitcnt lgkmcnt(0)")
    e(f"v_cndmask_b32 v{t0}, 0, v{t0}, vcc")
    e(f"v_add_u32 v{STP}, 1, v{t0}"); e(f"v_lshrrev_b32 v{STP}, 1, v{STP}"); e(f"v_mov_b32 v{INC}, v{STP}")
    e(f"v_readfirstlane_b32 s4, v{t2}") if False else None
    e(f"v_readfirstlane_b32 s6, v{t2}")
    wave_scan(INC)
    e(f"v_sub_u32 v{t1}, v{INC}, v{STP}")
    e(f"v_readlane_b32 s9, v{INC}, 63")
    for it in range(4): e(f"ds_bpermute_b32 v{BS+it}, v{DL+it}, v{t1}")
    e("s_waitcnt lgkmcnt(0)")
    for it in range(4):
        e(f"v_lshl_add_u32 v{BS+it}, v{BS+it}, 1, v{RK+it}"); e(f"v_lshlrev_b32 v{BS+it}, 3, v{BS+it}")
    for it in range(4):
        e(f"s_mov_b64 exec, s[{16+2*it}:{17+2*it}]")
        e(f"ds_write_b64 v{BS+it}, {vr(CR+2*it,2)} offset:{REC_L}")
    e("s_mov_b64 exec, s[24:25]")
    e("s_cmp_lg_u32 s8, 0"); e("s_cbranch_scc1 K2_NOPAD")
    e(f"v_lshl_add_u32 v{t1}, v{t1}, 1, v{t0}")
    e(f"v_and_b32 v{t2}, 1, v{t0}"); e(f"v_cmp_eq_u32 vcc, 1, v{t2}")
    e(f"v_mov_b32 v{RK}, {DUMMY_OFF}"); e(f"v_mov_b32 v{RK+1}, 0"); e(f"v_lshlrev_b32 v{DL}, 3, v{t1}")
    e("s_and_saveexec_b64 s[26:27], vcc"); e("s_cbranch_execz K2_NOPAD2")
    e(f"ds_write_b64 v{DL}, {vr(RK,2)} offset:{REC_L}")
    lab("K2_NOPAD2")
    e("s_mov_b64 exec, s[24:25]")
    lab("K2_NOPAD")
    e("s_cmp_lg_u32 s31, 0"); e("s_cbranch_scc1 K2_NOAU")
    e("s_waitcnt vmcnt(0)")
    e("s_cmp_ge_u32 s8, 5"); e("s_cbranch_scc1 K2_NOAL")
    e(f"ds_write_b128 v{FO}, {vr(AUR,4)} offset:{AL_L}"); e(f"ds_write_b128 v{FO}, {vr(AUR+4,4)} offset:{AL_L+16}")
    e(f"v_lshlrev_b32 v{t3}, 4, v0"); e(f"buffer_load_dwordx4 {vr(X,4)}, v{t3}, s[52:55], 0 offen")
    lab("K2_NOAL")
    e(f"v_and_b32 v{WC+3}, 0xffff0000, v{WC+1}"); e(f"v_lshlrev_b32 v{WC+2}, 16, v{WC+1}")
    e(f"v_and_b32 v{WC+1}, 0xffff0000, v{WC}"); e(f"v_lshlrev_b32 v{WC}, 16, v{WC}")
    for i in range(4): e(f"v_mul_f32 v{WC+i}, s29, v{WC+i}")
    lab("K2_NOAU")
    e("s_mov_b32 s16, 0x3f80"); e("s_mov_b32 s18, 1.0"); e("s_mov_b32 s19, 1.0")
    e("s_waitcnt lgkmcnt(0)"); e("s_barrier")
    stamp(3, 33, 26)
    REPEAT = int(ENV("REPEAT", "0"))
    if REPEAT: e(f"s_mov_b32 s33, {REPEAT}"); lab("K2_REP")
    D = RING - 1
    e("s_mul_i32 s10, s9, s8"); e("s_lshr_b32 s10, s10, 4")
    e("s_add_u32 s11, s8, 1"); e("s_mul_i32 s11, s9, s11"); e("s_lshr_b32 s11, s11, 4")
    e("s_sub_u32 s12, s11, s10")
    e("s_mov_b32 s17, -1")
    e("s_cmp_eq_u32 s12, 0"); e("s_cbranch_scc1 K2_MEND")
    if ENV("NOMAIN"): e("s_branch K2_MEND")
    e(f"v_cmp_ge_u32 vcc, s10, v{INC}"); e("s_bcnt1_i32_b64 s13, vcc")
    e(f"v_readlane_b32 s14, v{INC}, s13"); e(f"v_readlane_b32 s11, v{STP}, s13")
    e("s_sub_u32 s14, s14, s10")
    e("s_lshl_b32 s20, s13, 10"); e(f"s_add_u32 s20, s20, {ACC_L}")
    e("s_mov_b32 s21, s31")
    e("s_cmp_eq_u32 s14, s11"); e("s_cbranch_scc1 K2_NOHEAD")
    e("s_mov_b32 s17, s13"); e("s_lshl_b32 s20, s8, 10"); e(f"s_add_u32 s20, s20, {HEAD_L}"); e("s_mov_b32 s21, 0")
    lab("K2_NOHEAD")
    e("s_min_u32 s14, s14, s12"); e("s_sub_u32 s15, s12, s14")
    e("s_sub_u32 s14, s14, 1")
    e(f"v_lshrrev_b32 v{RA}, 5, v{LANE}"); e(f"v_lshlrev_b32 v{RA}, 3, v{RA}")
    e("s_lshl_b32 s10, s10, 4"); e(f"s_add_u32 s10, s10, {REC_L}"); e(f"v_add_u32 v{RA}, s10, v{RA}")
    for k in range(RING): e(f"ds_read_b64 {vr(REC+2*k,2)}, v{RA} offset:{16*k}")
    e("s_lshl_b32 s10, s13, 9"); e(f"v_add_u32 v{VA}, s10, v{LO16}"); e(f"ds_read_b128 {vr(A,4)}, v{VA} offset:{AL_L}")
    for i in range(4): e(f"v_mov_b32 v{NUM+i}, 0"); e(f"v_mov_b32 v{DEN+i}, 0")
    e(f"v_add_u32 v{RA}, {16*RING}, v{RA}")
    e("s_waitcnt lgkmcnt(0)")
    for k in range(D):
        e(f"s_cmp_gt_u32 s12, {k}"); e("s_cselect_b32 s28, 0, s30")
        e(f"v_add_u32 v{VA}, v{REC+2*k}, v{LO16}")
        e(f"buffer_load_dwordx4 {vr(PB+4*k,4)}, v{VA}, s[64:67], s28 offen")
    e(f"s_max_u32 s12, s12, {D}"); e(f"s_sub_u32 s12, s12, {D}")
    e("s_lshl_b32 s12, s12, 0")
    for k in range(RING):
        lab(f"K2_L{k}")
        r = REC + 2*k; p = PB + 4*k; kn = (k + D) % RING
        e(f"v_pk_fma_f32 {vr(T,2)}, {vr(r,2)}, {vr(WC,2)}, {vr(A,2)} op_sel:[1,0,0] op_sel_hi:[1,1,1]")
        e(f"v_pk_fma_f32 {vr(T+2,2)}, {vr(r,2)}, {vr(WC+2,2)}, {vr(A+2,2)} op_sel:[1,0,0] op_sel_hi:[1,1,1]")
        e("s_sub_u32 s12, s12, 1"); e("s_cselect_b32 s28, s30, s28")
        e("s_waitcnt lgkmcnt(0)")
        e(f"v_add_u32 v{VA}, v{REC+2*kn}, v{LO16}")
        if not ENV("NOLOAD"): e(f"buffer_load_dwordx4 {vr(PB+4*kn,4)}, v{VA}, s[64:67], s28 offen")
        e(f"ds_read_b64 {vr(r,2)}, v{RA} offset:{16*k}")
        e(f"s_waitcnt vmcnt({ENV('VM', D)})")
        for i in range(4): e(f"v_dot2_f32_bf16 v{T+i}, v{p+i}, s16, v{T+i}")
        if not ENV("NOTRANS"):
            for i in range(4): e(f"v_exp_f32 v{T+i}, v{T+i}")
        e(f"v_pk_add_f32 {vr(T,2)}, {vr(T,2)}, s[18:19]"); e(f"v_pk_add_f32 {vr(T+2,2)}, {vr(T+2,2)}, s[18:19]")
        if not ENV("NOTRANS"):
            for i in range(4): e(f"v_rcp_f32 v{T+i}, v{T+i}")
        if k == RING - 1: e(f"v_add_u32 v{RA}, {16*RING}, v{RA}")
        e("s_sub_u32 s14, s14, 1")
        e(f"v_pk_add_f32 {vr(DEN,2)}, {vr(DEN,2)}, {vr(T,2)}")
        e(f"v_pk_fma_f32 {vr(NUM,2)}, {vr(T,2)}, {vr(p,2)}, {vr(NUM,2)}")
        e(f"v_pk_add_f32 {vr(DEN+2,2)}, {vr(DEN+2,2)}, {vr(T+2,2)}")
        e(f"v_pk_fma_f32 {vr(NUM+2,2)}, {vr(T+2,2)}, {vr(p+2,2)}, {vr(NUM+2,2)}")
        e(f"s_cbranch_scc0 K2_N{k}")
        e(f"s_movk_i32 s22, {(k+1) % RING}"); e("s_branch K2_FLUSH")
        lab(f"K2_N{k}")
    e("s_branch K2_L0")
    lab("K2_FLUSH")
    if ENV("NOFLUSH"): e("s_branch K2_FSK")
    e("s_nop 0")
    e(f"v_permlane32_swap_b32 v{NUM}, v{NUM+1}"); e(f"v_permlane32_swap_b32 v{NUM+2}, v{NUM+3}")
    e(f"v_permlane32_swap_b32 v{DEN}, v{DEN+1}"); e(f"v_permlane32_swap_b32 v{DEN+2}, v{DEN+3}")
    e(f"v_add_u32 v{VA}, s20, v{AOFF}")
    e("s_nop 0")
    e(f"v_add_f32 v{NUM}, v{NUM}, v{NUM+1}"); e(f"v_add_f32 v{NUM+2}, v{NUM+2}, v{NUM+3}")
    e(f"v_add_f32 v{DEN}, v{DEN}, v{DEN+1}"); e(f"v_add_f32 v{DEN+2}, v{DEN+2}, v{DEN+3}")
    e("s_cmp_eq_u32 s21, 0"); e("s_cbranch_scc1 K2_FW")
    e(f"ds_read_b32 v{NUM+1}, v{VA}"); e(f"ds_read_b32 v{NUM+3}, v{VA} offset:8"); e(f"ds_read_b32 v{DEN+1}, v{VA} offset:512"); e(f"ds_read_b32 v{DEN+3}, v{VA} offset:520")
    e("s_waitcnt lgkmcnt(0)")
    e(f"v_add_f32 v{NUM}, v{NUM}, v{NUM+1}"); e(f"v_add_f32 v{NUM+2}, v{NUM+2}, v{NUM+3}")
    e(f"v_add_f32 v{DEN}, v{DEN}, v{DEN+1}"); e(f"v_add_f32 v{DEN+2}, v{DEN+2}, v{DEN+3}")
    lab("K2_FW")
    e(f"ds_write2_b32 v{VA}, v{NUM}, v{NUM+2} offset0:0 offset1:2"); e(f"ds_write2_b32 v{VA}, v{DEN}, v{DEN+2} offset0:128 offset1:130")
    lab("K2_FSK")
    e("s_cmp_eq_u32 s15, 0"); e("s_cbranch_scc1 K2_MEND")
    lab("K2_FN")
    e("s_add_u32 s13, s13, 1")
    e(f"v_readlane_b32 s14, v{STP}, s13")
    e("s_cmp_eq_u32 s14, 0"); e("s_cbranch_scc1 K2_FN")
    e("s_min_u32 s14, s14, s15"); e("s_sub_u32 s15, s15, s14"); e("s_sub_u32 s14, s14, 1")
    e("s_lshl_b32 s10, s13, 9"); e(f"v_add_u32 v{VA}, s10, v{LO16}"); e(f"ds_read_b128 {vr(A,4)}, v{VA} offset:{AL_L}")
    e("s_lshl_b32 s20, s13, 10"); e(f"s_add_u32 s20, s20, {ACC_L}"); e("s_mov_b32 s21, s31")
    for i in range(4): e(f"v_mov_b32 v{NUM+i}, 0"); e(f"v_mov_b32 v{DEN+i}, 0")
    e("s_waitcnt lgkmcnt(0)")
    for k in range(RING - 1):
        e(f"s_cmp_eq_u32 s22, {k}"); e(f"s_cbranch_scc1 K2_L{k}")
    e(f"s_branch K2_L{RING-1}")
    lab("K2_MEND")
    e("s_waitcnt vmcnt(0) lgkmcnt(0)")
    if REPEAT: e("s_sub_u32 s33, s33, 1"); e("s_cmp_lg_u32 s33, 0"); e("s_cbranch_scc1 K2_REP")
    e("s_lshl_b32 s10, s8, 2"); e(f"s_add_u32 s10, s10, {HID_L}"); e(f"v_mov_b32 v{t0}, s10"); e(f"v_mov_b32 v{t1}, s17")
    e(f"ds_write_b32 v{t0}, v{t1}")
    e("s_waitcnt lgkmcnt(0)")
    stamp(4, 33, 26)
    e("s_barrier")
    stamp(5, 33, 26)
    e("s_cmp_ge_u32 s8, 5"); e("s_cbranch_scc1 K2_FSKIP")
    FN, FD, HN, HD = REC, PB, PB + 8, NUM
    e(f"v_lshrrev_b32 v{t0}, 4, v0"); e(f"v_lshlrev_b32 v{t1}, 5, v0"); e(f"v_and_b32 v{t1}, 0x1e0, v{t1}")
    e(f"v_lshl_add_u32 v{t2}, v{t0}, 10, v{t1}")
    for hh in range(2):
        e(f"ds_read_b128 {vr(FN+4*hh,4)}, v{t2} offset:{ACC_L+16*hh}"); e(f"ds_read_b128 {vr(FD+4*hh,4)}, v{t2} offset:{ACC_L+512+16*hh}")
    e(f"v_and_b32 v{t3}, 15, v{LANE}"); e(f"v_lshlrev_b32 v{t3}, 2, v{t3}"); e(f"ds_read_b32 v{t3}, v{t3} offset:{HID_L}")
    e("s_waitcnt lgkmcnt(0)")
    e(f"v_lshrrev_b32 v{VA}, 2, v{t3}")
    e(f"v_cmp_eq_u32 vcc, s8, v{VA}")
    e("s_and_b32 s10, vcc_lo, 0xffff")
    lab("K2_FOLD")
    e("s_cmp_eq_u32 s10, 0"); e("s_cbranch_scc1 K2_FOLDED")
    e("s_ff1_i32_b32 s11, s10"); e("s_bitset0_b32 s10, s11")
    e(f"v_readlane_b32 s12, v{t3}, s11")
    e("s_lshl_b32 s13, s11, 10"); e(f"s_add_u32 s13, s13, {HEAD_L}"); e(f"v_add_u32 v{VA}, s13, v{t1}")
    for hh in range(2):
        e(f"ds_read_b128 {vr(HN+4*hh,4)}, v{VA} offset:{16*hh}"); e(f"ds_read_b128 {vr(HD+4*hh,4)}, v{VA} offset:{512+16*hh}")
    e("s_and_b32 s12, s12, 3"); e("s_lshl_b32 s12, s12, 4"); e("s_mov_b64 s[14:15], 0xffff"); e("s_lshl_b64 s[14:15], s[14:15], s12")
    e("s_waitcnt lgkmcnt(0)")
    e("s_mov_b64 exec, s[14:15]")
    for i in range(8): e(f"v_add_f32 v{FN+i}, v{FN+i}, v{HN+i}"); e(f"v_add_f32 v{FD+i}, v{FD+i}, v{HD+i}")
    e("s_mov_b64 exec, s[24:25]")
    e("s_branch K2_FOLD")
    lab("K2_FOLDED")
    e("s_cmp_eq_u32 s6, 0"); e("s_cbranch_scc1 K2_FIN")
    for hh in range(2):
        e(f"ds_write_b128 v{t2}, {vr(FN+4*hh,4)} offset:{ACC_L+16*hh}"); e(f"ds_write_b128 v{t2}, {vr(FD+4*hh,4)} offset:{ACC_L+512+16*hh}")
    e("s_cmp_ge_u32 s8, 1"); e("s_cbranch_scc1 K2_NR")
    e(f"v_lshlrev_b32 v{t0}, 2, v{LANE}"); e(f"v_mov_b32 v{t3}, 0"); e(f"ds_write_b32 v{t0}, v{t3}")
    e(f"v_mov_b32 v{t0}, {FLAG_L}"); e(f"ds_write_b32 v{t0}, v{t3}")
    e("s_branch K2_NR")
    lab("K2_FSKIP")
    e("s_cmp_eq_u32 s6, 0"); e("s_cbranch_scc1 K2_DONE")
    lab("K2_NR")
    e("s_mov_b32 s31, 1")
    e("s_branch K2_ROUND")
    lab("K2_FIN")
    U = HN; XU = HD
    for hh in range(2): e(f"ds_read_b128 {vr(U+4*hh,4)}, v{FO} offset:{AL_L+16*hh}")
    for i in range(4):
        e(f"v_lshlrev_b32 v{XU+2*i}, 16, v{X+i}"); e(f"v_and_b32 v{XU+2*i+1}, 0xffff0000, v{X+i}")
    e("s_mov_b32 s10, 0x358637bd")
    for i in range(8): e(f"v_add_f32 v{FD+i}, s10, v{FD+i}")
    for i in range(8): e(f"v_rcp_f32 v{FD+i}, v{FD+i}")
    e("s_waitcnt lgkmcnt(0)")
    for i in range(8): e(f"v_lshlrev_b32 v{U+i}, 16, v{U+i}")
    for i in range(8): e(f"v_fma_f32 v{FN+i}, v{FN+i}, v{FD+i}, v{U+i}")
    for i in range(8):
        e(f"v_mul_f32 v{FD+i}, 0, v{FN+i}")
        e(f"v_cmp_gt_f32 vcc, v{FN+i}, 0")
        e("s_nop 1")
        e(f"v_cndmask_b32 v{FN+i}, v{FD+i}, v{FN+i}, vcc")
        e(f"v_add_f32 v{FN+i}, v{FN+i}, v{XU+i}")
    for i in range(4): e(f"v_cvt_pk_bf16_f32 v{T+i}, v{FN+2*i}, v{FN+2*i+1}")
    e(f"v_lshlrev_b32 v{t3}, 4, v0")
    e(f"buffer_store_dwordx4 {vr(T,4)}, v{t3}, s[60:63], 0 offen")
    lab("K2_DONE")
    if STAMPS:
        e("s_waitcnt vmcnt(0)")
        stamp(6, 33, 26)
        stamp_flush(7, 33, 4, 1, 16, 40)
    lab("K2_END")
    e("s_endpgm")
    return NV

def kd(name, vgpr, sgpr):
    return f""".p2align 6
.amdhsa_kernel {name}
  .amdhsa_next_free_vgpr {vgpr}
  .amdhsa_next_free_sgpr {sgpr}
  .amdhsa_accum_offset {(vgpr + 3) // 4 * 4}
  .amdhsa_group_segment_fixed_size 0
  .amdhsa_kernarg_size 96
  .amdhsa_user_sgpr_count 2
  .amdhsa_user_sgpr_kernarg_segment_ptr 1
  .amdhsa_system_sgpr_workgroup_id_x 1
.end_amdhsa_kernel
"""

hdr = open("cdna_kernels/" + NAME + ".s.ref").read().split("; Override launch geometry")[0]
gen_k1(); nv = gen_k2()
out = hdr
out += "; @launch kernel=k1_kernel grid=(381,1,1) block=(256,1,1) lds=68608\n"
out += f"; @launch kernel=k2_kernel grid=(512,1,1) block=(1024,1,1) lds={K2_LDS}\n"
out += '.amdgcn_target "amdgcn-amd-amdhsa--gfx950"\n.text\n'
out += "\n".join(L) + "\n"
out += '.section .rodata,"a"\n' + kd("k1_kernel", 256, 96) + kd("k2_kernel", nv, 72)
dst = sys.argv[1] if len(sys.argv) > 1 else "cdna_kernels/" + NAME + ".s"
open(dst, "w").write(out)
print("wrote", dst, len(L), "lines; K2 LDS", K2_LDS, "vgpr", nv)
```

```python
import sys, os
N = 10000; E = 320000
NAME = "gather_scatter__edge_featured_mpnn_gatedgcn__graph"
T_OFF = 0
AU_OFF = 1256 * 4096
CELL_OFF = AU_OFF + 1250 * 4096
CELL_BYTES = 512 * 128 * 256
REC_OFF = CELL_OFF + CELL_BYTES
P = 125; CHUNK = 2560
REC_BYTES = P * CHUNK * 16
NL2E = 0xbfb8aa3b
BIG = 0x40000000
DUMMY_OFF = 10000 * 512
ENV = os.environ.get
STAMPS = ENV("STAMPS") == "1"
STAMP_OFF = 32 << 20
STT = ENV("STT", "nt"); STT = (" " + STT) if STT else ""
STR = ENV("STR", ""); STR = (" " + STR) if STR else ""
RING = int(ENV("RING", "4"))

L = []
def e(s): L.append("    " + s)
def lab(s): L.append(s + ":")
def vr(a, n): return f"v[{a}:{a+n-1}]"

def srd(s, lo, hi, size, add=None):
    if add is None:
        e(f"s_mov_b32 s{s}, s{lo}"); e(f"s_and_b32 s{s+1}, s{hi}, 0xffff")
    else:
        adds = add if isinstance(add, list) else [add]
        e(f"s_add_u32 s{s}, s{lo}, {adds[0]}"); e(f"s_addc_u32 s{s+1}, s{hi}, 0")
        for a in adds[1:]:
            e(f"s_add_u32 s{s}, s{s}, {a}"); e(f"s_addc_u32 s{s+1}, s{s+1}, 0")
        e(f"s_and_b32 s{s+1}, s{s+1}, 0xffff")
    e(f"s_mov_b32 s{s+2}, {size}"); e(f"s_mov_b32 s{s+3}, 0x20000")

K2MAP = [33, 34, 35, 36, 37, 56, 57, 58]
def sreg(sbase, idx): return K2MAP[idx] if sbase == 33 else sbase + idx
def stamp(idx, sbase, tmp):
    if not STAMPS: return
    e(f"s_memrealtime s[{tmp}:{tmp+1}]"); e("s_waitcnt lgkmcnt(0)"); e(f"s_mov_b32 s{sreg(sbase, idx)}, s{tmp}")
def stamp_flush(n, sbase, vS, kern, nwaves, sq):
    if not STAMPS: return
    e(f"v_mov_b32 v{vS}, 0")
    for i in range(n): e(f"v_writelane_b32 v{vS}, s{sreg(sbase, i)}, {i}")
    e(f"s_load_dwordx2 s[{sq}:{sq+1}], s[0:1], 88"); e("s_waitcnt lgkmcnt(0)")
    e(f"s_add_u32 s{sq}, s{sq}, {STAMP_OFF + kern * (4 << 20)}"); e(f"s_addc_u32 s{sq+1}, s{sq+1}, 0"); e(f"s_and_b32 s{sq+1}, s{sq+1}, 0xffff")
    e(f"s_mov_b32 s{sq+2}, 0x400000"); e(f"s_mov_b32 s{sq+3}, 0x20000")
    e(f"v_lshrrev_b32 v{vS+1}, 6, v0"); e("s_nop 0"); e(f"v_readfirstlane_b32 s{sq+4}, v{vS+1}")
    e(f"s_mul_i32 s{sq+5}, s2, {nwaves}"); e(f"s_add_u32 s{sq+4}, s{sq+4}, s{sq+5}"); e(f"s_lshl_b32 s{sq+4}, s{sq+4}, 8")
    e(f"v_and_b32 v{vS+1}, 63, v0"); e(f"v_lshlrev_b32 v{vS+1}, 2, v{vS+1}")
    e(f"buffer_store_dword v{vS}, v{vS+1}, s[{sq}:{sq+3}], s{sq+4} offen")

def wave_scan(v):
    for sh in (1, 2, 4, 8):
        e("s_nop 1")
        e(f"v_add_u32_dpp v{v}, v{v}, v{v} row_shr:{sh} row_mask:0xf bank_mask:0xf bound_ctrl:0")
    e("s_nop 1")
    e(f"v_add_u32_dpp v{v}, v{v}, v{v} row_bcast:15 row_mask:0xa bank_mask:0xf")
    e("s_nop 1")
    e(f"v_add_u32_dpp v{v}, v{v}, v{v} row_bcast:31 row_mask:0xc bank_mask:0xf")
    e("s_nop 1")

def load_kernargs():
    e("s_load_dwordx16 s[16:31], s[0:1], 0")
    e("s_load_dwordx8 s[32:39], s[0:1], 64")

def gen_k1():
    NG = 256
    L.append(".p2align 8"); L.append(".globl k1_kernel"); L.append(".type k1_kernel,@function"); lab("k1_kernel")
    e(f"s_cmp_ge_u32 s2, {NG + P}"); e("s_cbranch_scc1 K1_END2")
    load_kernargs()
    if STAMPS:
        for i in range(12): e(f"s_mov_b32 s{70+i}, 0")
    stamp(0, 70, 90)
    e(f"s_cmp_ge_u32 s2, {P}"); e("s_cbranch_scc1 K1_G")
    lab("K1_PART")
    if ENV("NOP"): e("s_branch K1_END")
    e("s_mov_b32 s3, s2")
    CEL, CNT, OVC = 0, 65536, 65536 + 2048
    e("v_lshlrev_b32 v1, 4, v0"); e("v_lshlrev_b32 v2, 2, v0"); e("v_lshlrev_b32 v7, 3, v0")
    e("v_mov_b32 v4, 0"); e("v_mov_b32 v5, 1"); e(f"v_add_u32 v3, {CNT}, v7"); e("v_mov_b32 v8, 0"); e("v_mov_b32 v9, 0")
    e("ds_write_b64 v3, v[8:9]"); e(f"v_mov_b32 v6, {OVC}"); e("ds_write_b32 v6, v4")
    e("s_mul_i32 s4, s3, 10240"); e("s_add_u32 s5, s4, 4096"); e("s_add_u32 s6, s4, 8192")
    e("s_mul_i32 s7, s3, 5120"); e("s_add_u32 s8, s7, 4096")
    e("s_waitcnt lgkmcnt(0)")
    e("s_barrier")
    DS, SS, ES, BK, AD, RK = 10, 20, 30, 40, 50, 60
    srd(40, 22, 23, E * 4)
    e(f"buffer_load_dwordx4 {vr(DS,4)}, v1, s[40:43], s4 offen"); e(f"buffer_load_dwordx4 {vr(DS+4,4)}, v1, s[40:43], s5 offen")
    e(f"buffer_load_dwordx2 {vr(DS+8,2)}, v7, s[40:43], s6 offen")
    srd(44, 20, 21, E * 4)
    e(f"buffer_load_dwordx4 {vr(SS,4)}, v1, s[44:47], s4 offen"); e(f"buffer_load_dwordx4 {vr(SS+4,4)}, v1, s[44:47], s5 offen")
    e(f"buffer_load_dwordx2 {vr(SS+8,2)}, v7, s[44:47], s6 offen")
    srd(48, 18, 19, E * 2)
    e(f"buffer_load_dwordx2 {vr(ES,2)}, v7, s[48:51], s7 offen"); e(f"buffer_load_dwordx2 {vr(ES+2,2)}, v7, s[48:51], s7 offen offset:2048")
    e(f"buffer_load_dword v{ES+4}, v2, s[48:51], s8 offen")
    srd(52, 38, 39, CELL_BYTES, add=CELL_OFF)
    srd(60, 38, 39, REC_BYTES, add=REC_OFF)
    e("s_mov_b32 s9, 219902336"); e("s_movk_i32 s10, 625"); e("s_mov_b32 s13, 0xffff0000")
    stamp(1, 70, 90)
    e("s_waitcnt vmcnt(6)")
    stamp(2, 70, 90)
    for k in range(10):
        e(f"v_mul_hi_u32 v{BK+k}, v{DS+k}, s9")
        e(f"v_lshl_add_u32 v{AD+k}, v{BK+k}, 2, v3") if False else None
        e(f"v_lshlrev_b32 v{AD+k}, 2, v{BK+k}"); e(f"v_add_u32 v{AD+k}, {CNT}, v{AD+k}")
        e(f"ds_add_rtn_u32 v{RK+k}, v{AD+k}, v5")
    for k in range(10):
        e(f"v_mul_lo_u32 v{AD+k}, v{BK+k}, s10")
        e(f"v_add_u32 v{AD+k}, 31, v{AD+k}")
        e(f"v_lshrrev_b32 v{AD+k}, 5, v{AD+k}")
        e(f"v_sub_u32 v{DS+k}, v{DS+k}, v{AD+k}")
    e("s_waitcnt vmcnt(0)")
    stamp(3, 70, 90)
    for k in range(10):
        j = k >> 1
        e(f"v_lshlrev_b32 v{84+2*k}, 9, v{SS+k}")
        e(f"v_lshlrev_b32 v{DS+k}, 2, v{DS+k}")
        if k & 1: e(f"v_and_or_b32 v{85+2*k}, v{ES+j}, s13, v{DS+k}")
        else: e(f"v_lshl_or_b32 v{85+2*k}, v{ES+j}, 16, v{DS+k}")
    e("s_mov_b64 s[22:23], exec"); e("s_mov_b64 s[20:21], 0")
    e("s_waitcnt lgkmcnt(0)")
    for k in range(10):
        e(f"v_lshlrev_b32 v{AD+k}, 7, v{BK+k}"); e(f"v_lshl_add_u32 v{AD+k}, v{RK+k}, 3, v{AD+k}")
        e(f"v_cmp_gt_u32 vcc, 15, v{RK+k}")
        e("s_andn2_b64 s[24:25], exec, vcc"); e("s_or_b64 s[20:21], s[20:21], s[24:25]")
        e("s_mov_b64 exec, vcc")
        e(f"ds_write_b64 v{AD+k}, {vr(84+2*k,2)} offset:8")
        e("s_mov_b64 exec, s[22:23]")
    e("s_cmp_eq_u64 s[20:21], 0"); e("s_cbranch_scc1 K1_NOOVF")
    e("s_mul_i32 s11, s3, %d" % (CHUNK * 16)); e("s_lshl_b32 s12, s3, 7"); e("s_add_u32 s12, s12, %d" % (16384 - 15 * 8))
    for k in range(10):
        e(f"v_cmp_le_u32 vcc, 15, v{RK+k}"); e(f"v_cmp_gt_u32 s[24:25], 31, v{RK+k}"); e("s_and_b64 s[26:27], vcc, s[24:25]")
        e("s_mov_b64 exec, s[26:27]"); e(f"s_cbranch_execz K1_OW{k}")
        e(f"v_lshlrev_b32 v70, 15, v{BK+k}"); e(f"v_lshl_add_u32 v70, v{RK+k}, 3, v70")
        e(f"buffer_store_dwordx2 {vr(84+2*k,2)}, v70, s[52:55], s12 offen")
        lab(f"K1_OW{k}")
        e("s_andn2_b64 exec, s[22:23], s[24:25]"); e(f"s_cbranch_execz K1_OV{k}")
        e(f"ds_add_rtn_u32 v70, v6, v5")
        e(f"v_mov_b32 v72, v{84+2*k}"); e(f"v_mov_b32 v73, v{85+2*k}"); e(f"v_mov_b32 v74, v{BK+k}"); e("v_mov_b32 v75, 0")
        e("s_waitcnt lgkmcnt(0)")
        e("v_lshlrev_b32 v70, 4, v70")
        e("buffer_store_dwordx4 v[72:75], v70, s[60:63], s11 offen")
        lab(f"K1_OV{k}")
        e("s_mov_b64 exec, s[22:23]")
    lab("K1_NOOVF")
    e("s_waitcnt lgkmcnt(0)"); e("s_barrier")
    stamp(5, 70, 90)
    e("v_lshrrev_b32 v12, 3, v0"); e("v_and_b32 v13, 7, v0")
    e(f"v_lshlrev_b32 v14, 2, v12"); e(f"v_add_u32 v14, {CNT}, v14")
    e("v_lshlrev_b32 v16, 4, v0")
    e("v_lshlrev_b32 v15, 15, v12"); e("v_lshl_add_u32 v15, v13, 4, v15")
    e("s_lshl_b32 s11, s3, 7")
    e("ds_read_b32 v17, v6")
    e("v_cmp_eq_u32 s[24:25], 0, v13")
    e("v_lshlrev_b32 v13, 1, v13")
    for half in range(2):
        for ps in range(8): e(f"ds_read_b32 v{20+ps}, v14 offset:{(half*8+ps)*128}")
        for ps in range(8): e(f"ds_read_b128 {vr(40+4*ps,4)}, v16 offset:{(half*8+ps)*4096}")
        for ps in range(8):
            e(f"s_waitcnt lgkmcnt({7-ps})")
            e(f"v_cndmask_b32 v{40+4*ps}, v{40+4*ps}, v{20+ps}, s[24:25]"); e(f"v_cndmask_b32 v{41+4*ps}, v{41+4*ps}, v17, s[24:25]")
            e(f"v_cmp_le_u32 vcc, v13, v{20+ps}")
            e("s_mov_b64 exec, vcc")
            e(f"buffer_store_dwordx4 {vr(40+4*ps,4)}, v15, s[52:55], s11 offen" + STR)
            e("s_mov_b64 exec, s[22:23]")
            e(f"s_add_u32 s11, s11, {32*32768}")
        if half == 0: e("s_nop 1")
    if ENV("WBL2"):
        e("s_waitcnt vmcnt(0)")
        e("buffer_wbl2 sc1")
    e("s_branch K1_END")
    lab("K1_G")
    if ENV("NOG"): e("s_branch K1_END")
    e("v_and_b32 v1, 63, v0"); e("v_lshrrev_b32 v2, 6, v0"); e("v_and_b32 v3, 15, v1"); e("v_readfirstlane_b32 s3, v2")
    e("v_lshrrev_b32 v4, 4, v1")
    e(f"s_sub_u32 s65, s2, {P}")
    e("s_and_b32 s4, s65, 1")
    e("s_lshr_b32 s5, s65, 1"); e("s_and_b32 s5, s5, 1")
    e("s_lshr_b32 s6, s65, 2")
    e("v_lshlrev_b32 v5, 11, v4"); e("v_lshl_add_u32 v5, v3, 3, v5")
    e("v_lshlrev_b32 v6, 8, v3"); e("v_lshl_add_u32 v6, v4, 4, v6")
    e("v_lshlrev_b32 v8, 4, v1")
    e("v_lshlrev_b32 v7, 11, v4"); e("v_lshl_add_u32 v7, v3, 4, v7")
    e("s_lshl_b32 s7, s6, 2"); e("s_add_u32 s7, s7, s3")
    e("s_lshl_b32 s8, s7, 12")
    e(f"s_add_u32 s9, s8, {256*4096}")
    e(f"s_add_u32 s10, s8, {512*4096}")
    e("s_lshl_b32 s11, s3, 13"); e("s_lshl_b32 s12, s4, 7"); e("s_add_u32 s11, s11, s12")
    e("s_waitcnt lgkmcnt(0)")
    XA, XB, LW, F, ACC, WF = 32, 48, 64, 96, 96, 128
    e("s_cmp_eq_u32 s5, 0")
    e("s_cselect_b32 s44, s26, s30"); e("s_cselect_b32 s45, s27, s31"); e("s_cselect_b32 s48, s32, s24"); e("s_cselect_b32 s49, s33, s25")
    e(f"s_mov_b32 s60, {NL2E:#x}")
    e("s_cselect_b32 s63, s60, 1.0"); e("s_cselect_b32 s64, 1.0, s60")
    e(f"s_mov_b32 s12, {AU_OFF}"); e("s_cselect_b32 s12, 0, s12")
    e("s_and_b32 s45, s45, 0xffff"); e("s_and_b32 s49, s49, 0xffff")
    e("s_mov_b32 s46, 32768"); e("s_mov_b32 s47, 0x20000"); e("s_mov_b32 s50, 32768"); e("s_mov_b32 s51, 0x20000")
    srd(40, 16, 17, N * 256)
    def grp(which):
        if which < 2:
            for i in range(8):
                e(f"buffer_load_dwordx2 {vr(LW+16*which+2*i,2)}, v5, s[{44+4*which}:{47+4*which}], s11 offen offset:{i*256}")
        else:
            for kk in range(4): e(f"buffer_load_dwordx4 {vr(XA+4*kk,4)}, v6, s[40:43], s8 offen offset:{kk*64}")
            for kk in range(4): e(f"buffer_load_dwordx4 {vr(XB+4*kk,4)}, v6, s[40:43], s9 offen offset:{kk*64}")
    if not ENV("ROT"):
        grp(0); grp(1); grp(2)
    else:
        e("s_cmp_eq_u32 s3, 1"); e("s_cbranch_scc1 K1_O1"); e("s_cmp_eq_u32 s3, 2"); e("s_cbranch_scc1 K1_O2")
        grp(0); grp(1); grp(2); e("s_branch K1_OD")
        lab("K1_O1"); grp(1); grp(2); grp(0); e("s_branch K1_OD")
        lab("K1_O2"); grp(2); grp(0); grp(1)
        lab("K1_OD")
    e("s_mov_b32 s13, 0x05040100"); e("s_mov_b32 s14, 0x07060302")
    e("s_mov_b32 s61, 0xffff0000"); e("s_mov_b32 s62, 0x80000000")
    e("s_lshl_b32 s15, s3, 12"); e("v_add_u32 v9, s15, v8")
    e("s_lshl_b32 s15, s4, 8")
    srd(52, 38, 39, 10001 * 512 - 256, add=["s12", "s15"])
    stamp(1, 70, 90)
    for m in range(2):
        e(f"s_waitcnt vmcnt({16 if m == 0 else 8})")
        for cc in range(4):
            for jj in range(4):
                lo = LW + 16*m + 2*(2*jj) + (cc >> 1); hi = LW + 16*m + 2*(2*jj+1) + (cc >> 1)
                e(f"v_perm_b32 v{F+4*cc+jj}, v{hi}, v{lo}, s{13 + (cc & 1)}")
            e(f"ds_write_b128 v9, {vr(F+4*cc,4)} offset:{m*16384 + cc*1024}")
    stamp(2, 70, 90)
    e("s_waitcnt lgkmcnt(0)"); e("s_barrier")
    for f in range(32):
        e(f"ds_read_b128 {vr(WF+4*f,4)}, v8 offset:{f*1024}")
    e("s_or_b32 s12, s7, s5"); e("s_cmp_eq_u32 s12, 0"); e("s_cbranch_scc0 K1_NODUMMY")
    e("v_mov_b32 v10, 0x7f80"); e("v_lshlrev_b32 v11, 2, v1")
    e(f"s_mov_b32 s12, {DUMMY_OFF}")
    e("buffer_store_dword v10, v11, s[52:55], s12 offen")
    lab("K1_NODUMMY")
    e("s_waitcnt vmcnt(0) lgkmcnt(0)")
    stamp(3, 70, 90)
    lab("K1_TILE")
    for kk in range(4):
        for m in range(2):
            for cc in range(4):
                a = ACC + 4*(m*4+cc); w = WF + 4*((m*4+kk)*4+cc)
                src = "0" if kk == 0 else vr(a,4)
                e(f"v_mfma_f32_16x16x32_bf16 {vr(a,4)}, {vr(XA+4*kk,4)}, {vr(w,4)}, {src}")
    e("s_waitcnt vmcnt(4)")
    for i in range(16): e(f"v_mov_b32 v{XA+i}, v{XB+i}")
    for kk in range(4): e(f"buffer_load_dwordx4 {vr(XB+4*kk,4)}, v6, s[40:43], s10 offen offset:{kk*64}")
    e("s_lshl_b32 s12, s8, 1")
    for r in range(4):
        for cc in range(4):
            b = ACC + 4*cc + r; hv = ACC + 16 + 4*cc + r; p = 64 + 4*r + cc; t1 = 80 + (cc & 1) * 4; t2 = t1 + 1; t3 = t1 + 2
            e(f"v_mul_f32 v{t1}, s63, v{b}")
            e(f"v_mul_f32 v{t3}, s64, v{hv}")
            e(f"v_cvt_pk_bf16_f32 v{t2}, v{t1}, 0")
            e(f"v_and_b32 v{p}, 0x7fffffff, v{t3}")
            e(f"v_add_u32 v{p}, 0x8000, v{p}")
            e(f"v_sub_u32 v{p}, v{p}, v{t2}")
            e(f"v_max_i32 v{p}, 0, v{p}")
            e(f"v_and_or_b32 v{p}, v{p}, s61, v{t2}")
            e(f"v_and_or_b32 v{p}, v{t3}, s62, v{p}")
        e(f"buffer_store_dwordx4 {vr(64+4*r,4)}, v7, s[52:55], s12 offen offset:{r*512}" + STT)
    e("s_cmp_lt_u32 s9, %d" % (625 * 4096)); e("s_mov_b32 s8, s9"); e("s_mov_b32 s9, s10"); e(f"s_mov_b32 s10, {BIG:#x}")
    e("s_cbranch_scc1 K1_TILE")
    e("s_branch K1_END")
    lab("K1_END")
    if ENV("DELAY"):
        e("s_memrealtime s[90:91]"); e("s_waitcnt lgkmcnt(0)"); e(f"s_add_u32 s92, s90, {ENV('DELAY')}")
        lab("K1_DLY")
        e("s_memrealtime s[90:91]"); e("s_waitcnt lgkmcnt(0)"); e("s_sub_u32 s93, s92, s90"); e("s_cmp_gt_i32 s93, 0"); e("s_cbranch_scc1 K1_DLY")
    if STAMPS:
        stamp(6, 70, 90)
        e("s_waitcnt vmcnt(0)")
        stamp(8, 70, 90)
        stamp_flush(12, 70, 1, 0, 4, 84)
    lab("K1_END2")
    e("s_endpgm")

CNT_L = 0; FLAG_L = 256; HID_L = 320; ACC_L = 512; AL_L = ACC_L + 20 * 1024; REC_L = AL_L + 20 * 512; HEAD_L = REC_L + (3875 + 32) * 8 + 264
K2_LDS = HEAD_L + 16 * 1024
def gen_k2():
    L.append(".p2align 8"); L.append(".globl k2_kernel"); L.append(".type k2_kernel,@function"); lab("k2_kernel")
    e("s_cmp_ge_u32 s2, 512"); e("s_cbranch_scc1 K2_END")
    load_kernargs()
    LO16, RA, LANE, WC, A, NUM, DEN, T, VA, STP, INC, AOFF = 1, 2, 3, 4, 8, 12, 16, 20, 24, 25, 26, 27
    X, DSC = 28, 32
    assert RING in (4, 5)
    REC = 34; PB = 42
    RK_ = [34, 36, 38, 40, 32][:RING]; PK_ = [42, 46, 50, 54, 58][:RING]
    t0, t1, t2, t3, FO = 58, 59, 60, 61, 62
    NV = 64
    e("s_mov_b32 s3, s2")
    e("s_mul_i32 s6, s3, 625"); e("s_add_u32 s6, s6, 31"); e("s_lshr_b32 s5, s6, 5"); e("s_add_u32 s6, s6, 625"); e("s_lshr_b32 s6, s6, 5")
    e("s_sub_u32 s7, s6, s5")
    e(f"v_and_b32 v{LANE}, 63, v0"); e(f"v_lshrrev_b32 v{t0}, 6, v0"); e(f"v_and_b32 v{t1}, 31, v0"); e(f"v_readfirstlane_b32 s8, v{t0}")
    e(f"v_lshlrev_b32 v{LO16}, 4, v{t1}")
    if STAMPS: e("s_memrealtime s[70:71]"); e("s_waitcnt lgkmcnt(0)"); e("s_mov_b32 s15, s70")
    e(f"v_lshlrev_b32 v{VA}, 4, v0")
    e(f"v_lshlrev_b32 v{FO}, 5, v0")
    e(f"v_lshlrev_b32 v{t3}, 4, v0")
    for i in range(4): e(f"v_mov_b32 v{T+i}, 0")
    e(f"ds_write_b128 v{t3}, {vr(T,4)} offset:{ACC_L}")
    e("s_cmp_ge_u32 s8, 4"); e("s_cbranch_scc1 K2_Z1")
    e(f"ds_write_b128 v{t3}, {vr(T,4)} offset:{ACC_L+16384}")
    e("s_cmp_ge_u32 s8, 2"); e("s_cbranch_scc1 K2_Z1")
    e(f"v_lshlrev_b32 v{t2}, 2, v0"); e(f"ds_write_b32 v{t2}, v{T}")
    lab("K2_Z1")
    e("s_waitcnt lgkmcnt(0)")
    e("s_lshl_b32 s10, s3, 15"); srd(40, 38, 39, 32768, add=[CELL_OFF, "s10"])
    CR = REC; AUR = PB + 8
    e(f"buffer_load_dwordx4 {vr(CR,4)}, v{VA}, s[40:43], 0 offen")
    e("s_barrier")
    srd(68, 28, 29, 256)
    e(f"v_lshrrev_b32 v{t2}, 1, v{LO16}"); e(f"buffer_load_dwordx2 {vr(WC,2)}, v{t2}, s[68:71], 0 offen")
    e("s_cmp_ge_u32 s8, 5"); e("s_cbranch_scc1 K2_NOAU0")
    e("s_lshl_b32 s9, s5, 9"); e("s_lshl_b32 s12, s7, 9"); srd(48, 38, 39, "s12", add=[AU_OFF, "s9"])
    e(f"buffer_load_dwordx4 {vr(AUR,4)}, v{FO}, s[48:51], 0 offen"); e(f"buffer_load_dwordx4 {vr(AUR+4,4)}, v{FO}, s[48:51], 0 offen offset:16")
    lab("K2_NOAU0")
    e("s_mov_b32 s44, s16"); e("s_mov_b32 s45, s17"); e("s_mov_b32 s46, s34"); e("s_mov_b32 s47, s35")
    srd(64, 38, 39, 10001 * 512)
    e(f"s_mov_b32 s29, {NL2E:#x}"); e(f"s_mov_b32 s30, {BIG:#x}"); e("s_mov_b32 s31, 0"); e("s_mov_b32 s32, 0")
    e("s_mov_b64 s[24:25], exec")
    if STAMPS:
        e("s_mov_b32 s33, s15")
        for i in range(1, 8): e(f"s_mov_b32 s{K2MAP[i]}, 0")
    e(f"v_lshrrev_b32 v{t2}, 5, v{LANE}"); e(f"v_lshl_add_u32 v{AOFF}, v{t2}, 2, v{LO16}")
    e(f"v_and_b32 v{t1}, 7, v0"); e(f"v_lshlrev_b32 v{t1}, 1, v{t1}")
    e(f"v_add_u32 v{t0}, -1, v{t1}")
    e("v_cmp_gt_u32 vcc, %d, v0" % (P * 8)); e("s_mov_b64 s[26:27], vcc")
    e("s_cmp_ge_u32 s8, 5"); e("s_cbranch_scc1 K2_W1"); e("s_waitcnt vmcnt(3)"); e("s_branch K2_W2")
    lab("K2_W1"); e("s_waitcnt vmcnt(1)"); lab("K2_W2")
    stamp(1, 33, 60) if False else None
    e(f"v_mov_b32_dpp v{DSC}, v{CR} quad_perm:[0,0,0,0] row_mask:0xf bank_mask:0xf")
    e("s_nop 1")
    e(f"v_mov_b32_dpp v{DSC}, v{DSC} row_shr:4 row_mask:0xf bank_mask:0xa")
    e("s_nop 0")
    e(f"v_cndmask_b32 v{DSC}, 0, v{DSC}, s[26:27]")
    RK, DL, BS = PB, PB + 4, NUM
    e(f"v_cmp_lt_u32 s[16:17], v{t0}, v{DSC}"); e(f"v_cmp_lt_u32 s[18:19], v{t1}, v{DSC}")
    e("s_mov_b64 s[20:21], 0"); e("s_mov_b64 s[22:23], 0")
    e(f"v_cmp_lt_u32 vcc, 15, v{DSC}"); e("s_cbranch_vccz K2_HAVE")
    e(f"v_mov_b32_dpp v{DSC+1}, v{CR+1} quad_perm:[0,0,0,0] row_mask:0xf bank_mask:0xf")
    e("s_nop 1")
    e(f"v_mov_b32_dpp v{DSC+1}, v{DSC+1} row_shr:4 row_mask:0xf bank_mask:0xa")
    e("s_mov_b64 exec, vcc"); e("s_mov_b32 s10, 0x4000")
    e(f"buffer_load_dwordx4 {vr(CR+4,4)}, v{VA}, s[40:43], s10 offen")
    e("s_mov_b64 exec, s[24:25]")
    e(f"v_add_u32 v{t0}, 15, v{t1}"); e(f"v_cmp_lt_u32 s[20:21], v{t0}, v{DSC}"); e(f"v_add_u32 v{t0}, 16, v{t1}"); e(f"v_cmp_lt_u32 s[22:23], v{t0}, v{DSC}")
    e("s_waitcnt vmcnt(0)")
    e("s_branch K2_HAVE2")
    lab("K2_ROUND")
    srd(52, 38, 39, REC_BYTES, add=REC_OFF)
    e(f"v_lshlrev_b32 v{VA}, 4, v0"); e(f"v_and_b32 v{VA}, 0xffffff80, v{VA}")
    e(f"buffer_load_dwordx2 {vr(DSC,2)}, v{VA}, s[40:43], 0 offen")
    e("s_waitcnt vmcnt(0)")
    e("v_cmp_gt_u32 vcc, %d, v0" % (P * 8)); e("s_nop 1"); e(f"v_cndmask_b32 v{DSC}, 0, v{DSC}, vcc")
    e(f"v_lshrrev_b32 v{t2}, 3, v0"); e("s_movk_i32 s9, %d" % CHUNK); e(f"v_mul_lo_u32 v{t2}, v{t2}, s9")
    e(f"v_and_b32 v{t1}, 7, v0"); e(f"v_add_u32 v{t1}, s32, v{t1}")
    e(f"v_cmp_lt_u32 s[26:27], 31, v{DSC}")
    for it in range(4):
        e(f"v_add_u32 v{t0}, {8*it}, v{t1}")
        e(f"v_cmp_lt_u32 s[{16+2*it}:{17+2*it}], v{t0}, v{DSC+1}")
        e(f"s_and_b64 s[{16+2*it}:{17+2*it}], s[{16+2*it}:{17+2*it}], s[26:27]")
        e(f"v_add_lshl_u32 v{BS+it}, v{t2}, v{t0}, 4")
    for it in range(4):
        e(f"s_mov_b64 exec, s[{16+2*it}:{17+2*it}]")
        e(f"s_cbranch_execz K2_NOLD{it}")
        e(f"buffer_load_dwordx4 {vr(PB+4*it,4)}, v{BS+it}, s[52:55], 0 offen")
        lab(f"K2_NOLD{it}")
    e("s_mov_b64 exec, s[24:25]")
    e("s_add_u32 s32, s32, 32")
    e("s_waitcnt vmcnt(0) lgkmcnt(0)"); e("s_barrier")
    for it in range(4):
        e(f"v_cmp_eq_u32 vcc, s3, v{PB+4*it+2}")
        e(f"s_and_b64 s[{16+2*it}:{17+2*it}], s[{16+2*it}:{17+2*it}], vcc")
        e(f"v_mov_b32 v{CR+2*it}, v{PB+4*it}"); e(f"v_mov_b32 v{CR+2*it+1}, v{PB+4*it+1}")
    lab("K2_HAVE2")
    e(f"v_cmp_lt_u32 vcc, 31, v{DSC}"); e(f"v_cmp_lt_u32 s[26:27], s32, v{DSC+1}"); e("s_and_b64 vcc, vcc, s[26:27]")
    e("s_and_saveexec_b64 s[26:27], vcc"); e("s_cbranch_execz K2_NOFLAG2")
    e(f"v_mov_b32 v{t0}, 1"); e(f"v_mov_b32 v{t1}, {FLAG_L}"); e(f"ds_write_b32 v{t1}, v{t0}")
    lab("K2_NOFLAG2")
    e("s_mov_b64 exec, s[24:25]")
    lab("K2_HAVE")
    stamp(1, 33, 60)
    e(f"v_mov_b32 v{t0}, 1")
    e("s_or_b64 s[26:27], s[20:21], s[22:23]")
    for it in range(4):
        if it == 2: e("s_cmp_eq_u64 s[26:27], 0"); e("s_cbranch_scc1 K2_SK1")
        e(f"v_and_b32 v{DL+it}, 0x7c, v{CR+2*it+1}")
        e(f"s_mov_b64 exec, s[{16+2*it}:{17+2*it}]")
        e(f"ds_add_rtn_u32 v{RK+it}, v{DL+it}, v{t0} offset:{CNT_L}")
        e("s_mov_b64 exec, s[24:25]")
    lab("K2_SK1")
    e("s_waitcnt lgkmcnt(0)"); e("s_barrier")
    stamp(2, 33, 60)
    e(f"v_and_b32 v{t1}, 31, v{LANE}"); e(f"v_lshlrev_b32 v{t1}, 2, v{t1}")
    e(f"ds_read_b32 v{t0}, v{t1} offset:{CNT_L}"); e(f"v_mov_b32 v{t2}, {FLAG_L}"); e(f"ds_read_b32 v{t2}, v{t2}")
    e("s_waitcnt lgkmcnt(0)")
    e(f"v_add_u32 v{STP}, 1, v{t0}"); e(f"v_lshrrev_b32 v{STP}, 1, v{STP}"); e(f"v_mov_b32 v{INC}, v{STP}")
    e(f"v_readfirstlane_b32 s6, v{t2}")
    for sh in (1, 2, 4, 8):
        e("s_nop 1")
        e(f"v_add_u32_dpp v{INC}, v{INC}, v{INC} row_shr:{sh} row_mask:0xf bank_mask:0xf bound_ctrl:0")
    e("s_nop 1")
    e(f"v_add_u32_dpp v{INC}, v{INC}, v{INC} row_bcast:15 row_mask:0xa bank_mask:0xf")
    e("s_nop 1")
    e(f"v_sub_u32 v{t1}, v{INC}, v{STP}")
    e(f"v_readlane_b32 s9, v{INC}, 31")
    for it in range(4):
        if it == 2: e("s_cmp_eq_u64 s[26:27], 0"); e("s_cbranch_scc1 K2_SK2")
        e(f"ds_bpermute_b32 v{BS+it}, v{DL+it}, v{t1}")
    lab("K2_SK2")
    e("s_waitcnt lgkmcnt(0)")
    for it in range(4):
        if it == 2: e("s_cmp_eq_u64 s[26:27], 0"); e("s_cbranch_scc1 K2_SK3")
        e(f"v_lshl_add_u32 v{BS+it}, v{BS+it}, 1, v{RK+it}"); e(f"v_lshlrev_b32 v{BS+it}, 3, v{BS+it}")
        e(f"s_mov_b64 exec, s[{16+2*it}:{17+2*it}]")
        e(f"ds_write_b64 v{BS+it}, {vr(CR+2*it,2)} offset:{REC_L}")
        e("s_mov_b64 exec, s[24:25]")
    lab("K2_SK3")
    e("s_cmp_lg_u32 s8, 15"); e("s_cbranch_scc1 K2_NOPAD")
    e(f"v_lshl_add_u32 v{t1}, v{t1}, 1, v{t0}")
    e(f"v_and_b32 v{t2}, 1, v{t0}"); e(f"v_cmp_eq_u32 vcc, 1, v{t2}")
    e(f"v_mov_b32 v{RK}, {DUMMY_OFF}"); e(f"v_mov_b32 v{RK+1}, 0"); e(f"v_lshlrev_b32 v{DL}, 3, v{t1}")
    e("s_and_b32 vcc_hi, vcc_hi, 0")
    e("s_and_saveexec_b64 s[26:27], vcc"); e("s_cbranch_execz K2_NOPAD2")
    e(f"ds_write_b64 v{DL}, {vr(RK,2)} offset:{REC_L}")
    lab("K2_NOPAD2")
    e("s_mov_b64 exec, s[24:25]")
    lab("K2_NOPAD")
    e("s_cmp_lg_u32 s31, 0"); e("s_cbranch_scc1 K2_NOAU")
    e("s_cmp_ge_u32 s8, 5"); e("s_cbranch_scc1 K2_NOAL")
    e("s_lshl_b32 s10, s5, 8"); e("s_lshl_b32 s12, s7, 8")
    srd(52, 44, 45, "s12", add=["s10"])
    e("s_waitcnt vmcnt(0)")
    e(f"ds_write_b128 v{FO}, {vr(AUR,4)} offset:{AL_L}"); e(f"ds_write_b128 v{FO}, {vr(AUR+4,4)} offset:{AL_L+16}")
    e(f"v_lshlrev_b32 v{t3}, 4, v0"); e(f"buffer_load_dwordx4 {vr(X,4)}, v{t3}, s[52:55], 0 offen")
    e("s_branch K2_NOAL2")
    lab("K2_NOAL")
    e("s_waitcnt vmcnt(0)")
    lab("K2_NOAL2")
    e(f"v_and_b32 v{WC+3}, 0xffff0000, v{WC+1}"); e(f"v_lshlrev_b32 v{WC+2}, 16, v{WC+1}")
    e(f"v_and_b32 v{WC+1}, 0xffff0000, v{WC}"); e(f"v_lshlrev_b32 v{WC}, 16, v{WC}")
    for i in range(4): e(f"v_mul_f32 v{WC+i}, s29, v{WC+i}")
    lab("K2_NOAU")
    e("s_mov_b32 s16, 0x3f80"); e("s_mov_b32 s18, 1.0"); e("s_mov_b32 s19, 1.0")
    e("s_waitcnt lgkmcnt(0)"); e("s_barrier")
    stamp(3, 33, 60)
    REPEAT = int(ENV("REPEAT", "0"))
    if REPEAT: e(f"s_mov_b32 s33, {REPEAT}"); lab("K2_REP")
    D = RING - 1
    e("s_mul_i32 s10, s9, s8"); e("s_lshr_b32 s10, s10, 4")
    e("s_add_u32 s11, s8, 1"); e("s_mul_i32 s11, s9, s11"); e("s_lshr_b32 s11, s11, 4")
    e("s_sub_u32 s12, s11, s10")
    e("s_mov_b32 s17, -1")
    e("s_cmp_eq_u32 s12, 0"); e("s_cbranch_scc1 K2_MEND")
    if ENV("NOMAIN"): e("s_branch K2_MEND")
    e(f"v_cmp_ge_u32 vcc, s10, v{INC}"); e("s_bcnt1_i32_b32 s13, vcc_lo")
    e(f"v_readlane_b32 s14, v{INC}, s13"); e(f"v_readlane_b32 s11, v{STP}, s13")
    e("s_sub_u32 s14, s14, s10")
    e("s_lshl_b32 s20, s13, 10"); e(f"s_add_u32 s20, s20, {ACC_L}")
    e("s_mov_b32 s21, s31")
    e("s_cmp_eq_u32 s14, s11"); e("s_cbranch_scc1 K2_NOHEAD")
    e("s_mov_b32 s17, s13"); e("s_lshl_b32 s20, s8, 10"); e(f"s_add_u32 s20, s20, {HEAD_L}"); e("s_mov_b32 s21, 0")
    lab("K2_NOHEAD")
    e("s_min_u32 s14, s14, s12"); e("s_sub_u32 s15, s12, s14")
    e("s_sub_u32 s14, s14, 1")
    if ENV("PRIO", "1") == "1":
        e("s_lshr_b32 s48, s12, 2"); e("s_lshr_b32 s49, s12, 1"); e("s_add_u32 s50, s48, s49")
        e("s_setprio 3")
    e(f"v_lshrrev_b32 v{RA}, 5, v{LANE}"); e(f"v_lshlrev_b32 v{RA}, 3, v{RA}")
    e("s_lshl_b32 s10, s10, 4"); e(f"s_add_u32 s10, s10, {REC_L}"); e(f"v_add_u32 v{RA}, s10, v{RA}")
    for k in range(RING): e(f"ds_read_b64 {vr(RK_[k],2)}, v{RA} offset:{16*k}")
    e("s_lshl_b32 s10, s13, 9"); e(f"v_add_u32 v{VA}, s10, v{LO16}"); e(f"ds_read_b128 {vr(A,4)}, v{VA} offset:{AL_L}")
    for i in range(4): e(f"v_mov_b32 v{NUM+i}, 0"); e(f"v_mov_b32 v{DEN+i}, 0")
    e(f"v_add_u32 v{RA}, {16*RING}, v{RA}")
    e("s_waitcnt lgkmcnt(0)")
    for k in range(D):
        e(f"s_cmp_gt_u32 s12, {k}"); e("s_cselect_b32 s28, 0, s30")
        e(f"v_add_u32 v{VA}, v{RK_[k]}, v{LO16}")
        e(f"buffer_load_dwordx4 {vr(PK_[k],4)}, v{VA}, s[64:67], s28 offen")
    e(f"s_max_u32 s12, s12, {D}"); e(f"s_sub_u32 s12, s12, {D}")
    e("s_lshl_b32 s12, s12, 0")
    for k in range(RING):
        lab(f"K2_L{k}")
        r = RK_[k]; p = PK_[k]; kn = (k + D) % RING
        e(f"v_pk_fma_f32 {vr(T,2)}, {vr(r,2)}, {vr(WC,2)}, {vr(A,2)} op_sel:[1,0,0] op_sel_hi:[1,1,1]")
        e(f"v_pk_fma_f32 {vr(T+2,2)}, {vr(r,2)}, {vr(WC+2,2)}, {vr(A+2,2)} op_sel:[1,0,0] op_sel_hi:[1,1,1]")
        e("s_sub_u32 s12, s12, 1"); e("s_cselect_b32 s28, s30, s28")
        e("s_waitcnt lgkmcnt(0)")
        e(f"v_add_u32 v{VA}, v{RK_[kn]}, v{LO16}")
        if not ENV("NOLOAD"): e(f"buffer_load_dwordx4 {vr(PK_[kn],4)}, v{VA}, s[64:67], s28 offen")
        e(f"ds_read_b64 {vr(r,2)}, v{RA} offset:{16*k}")
        e(f"s_waitcnt vmcnt({ENV('VM', D)})")
        for i in range(4): e(f"v_dot2_f32_bf16 v{T+i}, v{p+i}, s16, v{T+i}")
        if not ENV("NOTRANS"):
            for i in range(4): e(f"v_exp_f32 v{T+i}, v{T+i}")
        e(f"v_pk_add_f32 {vr(T,2)}, {vr(T,2)}, s[18:19]"); e(f"v_pk_add_f32 {vr(T+2,2)}, {vr(T+2,2)}, s[18:19]")
        if not ENV("NOTRANS"):
            for i in range(4): e(f"v_rcp_f32 v{T+i}, v{T+i}")
        if k == RING - 1: e(f"v_add_u32 v{RA}, {16*RING}, v{RA}")
        e("s_sub_u32 s14, s14, 1")
        e(f"v_pk_add_f32 {vr(DEN,2)}, {vr(DEN,2)}, {vr(T,2)}")
        e(f"v_pk_fma_f32 {vr(NUM,2)}, {vr(T,2)}, {vr(p,2)}, {vr(NUM,2)}")
        e(f"v_pk_add_f32 {vr(DEN+2,2)}, {vr(DEN+2,2)}, {vr(T+2,2)}")
        e(f"v_pk_fma_f32 {vr(NUM+2,2)}, {vr(T+2,2)}, {vr(p+2,2)}, {vr(NUM+2,2)}")
        e(f"s_cbranch_scc0 K2_N{k}")
        e(f"s_movk_i32 s22, {(k+1) % RING}"); e("s_branch K2_FLUSH")
        lab(f"K2_N{k}")
    if ENV("PRIO", "1") == "1" and ENV("PRIO2", "0") == "1":
        e("s_cmp_gt_i32 s12, s50"); e("s_cbranch_scc1 K2_L0")
        e("s_setprio 2"); e("s_cmp_gt_i32 s12, s49"); e("s_cbranch_scc1 K2_L0")
        e("s_setprio 1"); e("s_cmp_gt_i32 s12, s48"); e("s_cbranch_scc1 K2_L0")
        e("s_setprio 0")
    e("s_branch K2_L0")
    lab("K2_FLUSH")
    if ENV("NOFLUSH"): e("s_branch K2_FSK")
    e("s_nop 0")
    e(f"v_permlane32_swap_b32 v{NUM}, v{NUM+1}"); e(f"v_permlane32_swap_b32 v{NUM+2}, v{NUM+3}")
    e(f"v_permlane32_swap_b32 v{DEN}, v{DEN+1}"); e(f"v_permlane32_swap_b32 v{DEN+2}, v{DEN+3}")
    e(f"v_add_u32 v{VA}, s20, v{AOFF}")
    e("s_nop 0")
    e(f"v_add_f32 v{NUM}, v{NUM}, v{NUM+1}"); e(f"v_add_f32 v{NUM+2}, v{NUM+2}, v{NUM+3}")
    e(f"v_add_f32 v{DEN}, v{DEN}, v{DEN+1}"); e(f"v_add_f32 v{DEN+2}, v{DEN+2}, v{DEN+3}")
    e("s_cmp_eq_u32 s21, 0"); e("s_cbranch_scc1 K2_FW")
    e(f"ds_read_b32 v{NUM+1}, v{VA}"); e(f"ds_read_b32 v{NUM+3}, v{VA} offset:8"); e(f"ds_read_b32 v{DEN+1}, v{VA} offset:512"); e(f"ds_read_b32 v{DEN+3}, v{VA} offset:520")
    e("s_waitcnt lgkmcnt(0)")
    e(f"v_add_f32 v{NUM}, v{NUM}, v{NUM+1}"); e(f"v_add_f32 v{NUM+2}, v{NUM+2}, v{NUM+3}")
    e(f"v_add_f32 v{DEN}, v{DEN}, v{DEN+1}"); e(f"v_add_f32 v{DEN+2}, v{DEN+2}, v{DEN+3}")
    lab("K2_FW")
    e(f"ds_write2_b32 v{VA}, v{NUM}, v{NUM+2} offset0:0 offset1:2"); e(f"ds_write2_b32 v{VA}, v{DEN}, v{DEN+2} offset0:128 offset1:130")
    lab("K2_FSK")
    e("s_cmp_eq_u32 s15, 0"); e("s_cbranch_scc1 K2_MEND")
    lab("K2_FN")
    e("s_add_u32 s13, s13, 1")
    e(f"v_readlane_b32 s14, v{STP}, s13")
    e("s_cmp_eq_u32 s14, 0"); e("s_cbranch_scc1 K2_FN")
    if ENV("PRIO", "1") == "1" and ENV("PRIO2", "0") != "1":
        e("s_cmp_gt_u32 s15, s50"); e("s_cbranch_scc1 K2_PD")
        e("s_setprio 2"); e("s_cmp_gt_u32 s15, s49"); e("s_cbranch_scc1 K2_PD")
        e("s_setprio 1"); e("s_cmp_gt_u32 s15, s48"); e("s_cbranch_scc1 K2_PD")
        e("s_setprio 0")
        lab("K2_PD")
    e("s_min_u32 s14, s14, s15"); e("s_sub_u32 s15, s15, s14"); e("s_sub_u32 s14, s14, 1")
    e("s_lshl_b32 s10, s13, 9"); e(f"v_add_u32 v{VA}, s10, v{LO16}"); e(f"ds_read_b128 {vr(A,4)}, v{VA} offset:{AL_L}")
    e("s_lshl_b32 s20, s13, 10"); e(f"s_add_u32 s20, s20, {ACC_L}"); e("s_mov_b32 s21, s31")
    for i in range(4): e(f"v_mov_b32 v{NUM+i}, 0"); e(f"v_mov_b32 v{DEN+i}, 0")
    e("s_waitcnt lgkmcnt(0)")
    for k in range(RING - 1):
        e(f"s_cmp_eq_u32 s22, {k}"); e(f"s_cbranch_scc1 K2_L{k}")
    e(f"s_branch K2_L{RING-1}")
    lab("K2_MEND")
    e("s_setprio 0")
    e("s_waitcnt vmcnt(0) lgkmcnt(0)")
    if REPEAT: e("s_sub_u32 s33, s33, 1"); e("s_cmp_lg_u32 s33, 0"); e("s_cbranch_scc1 K2_REP")
    e("s_lshl_b32 s10, s8, 2"); e(f"s_add_u32 s10, s10, {HID_L}"); e(f"v_mov_b32 v{t0}, s10"); e(f"v_mov_b32 v{t1}, s17")
    e(f"ds_write_b32 v{t0}, v{t1}")
    e("s_waitcnt lgkmcnt(0)")
    stamp(4, 33, 60)
    e("s_barrier")
    stamp(5, 33, 60)
    e("s_cmp_ge_u32 s8, 5"); e("s_cbranch_scc1 K2_FSKIP")
    FN, FD, HN, HD = REC, PB, PB + 8, NUM
    e(f"v_lshrrev_b32 v{t0}, 4, v0"); e(f"v_lshlrev_b32 v{t1}, 5, v0"); e(f"v_and_b32 v{t1}, 0x1e0, v{t1}")
    e(f"v_lshl_add_u32 v{t2}, v{t0}, 10, v{t1}")
    for hh in range(2):
        e(f"ds_read_b128 {vr(FN+4*hh,4)}, v{t2} offset:{ACC_L+16*hh}"); e(f"ds_read_b128 {vr(FD+4*hh,4)}, v{t2} offset:{ACC_L+512+16*hh}")
    e(f"v_and_b32 v{t3}, 15, v{LANE}"); e(f"v_lshlrev_b32 v{t3}, 2, v{t3}"); e(f"ds_read_b32 v{t3}, v{t3} offset:{HID_L}")
    e("s_waitcnt lgkmcnt(0)")
    e(f"v_lshrrev_b32 v{VA}, 2, v{t3}")
    e(f"v_cmp_eq_u32 vcc, s8, v{VA}")
    e("s_and_b32 s10, vcc_lo, 0xffff")
    lab("K2_FOLD")
    e("s_cmp_eq_u32 s10, 0"); e("s_cbranch_scc1 K2_FOLDED")
    e("s_ff1_i32_b32 s11, s10"); e("s_bitset0_b32 s10, s11")
    e(f"v_readlane_b32 s12, v{t3}, s11")
    e("s_lshl_b32 s13, s11, 10"); e(f"s_add_u32 s13, s13, {HEAD_L}"); e(f"v_add_u32 v{VA}, s13, v{t1}")
    for hh in range(2):
        e(f"ds_read_b128 {vr(HN+4*hh,4)}, v{VA} offset:{16*hh}"); e(f"ds_read_b128 {vr(HD+4*hh,4)}, v{VA} offset:{512+16*hh}")
    e("s_and_b32 s12, s12, 3"); e("s_lshl_b32 s12, s12, 4"); e("s_mov_b64 s[14:15], 0xffff"); e("s_lshl_b64 s[14:15], s[14:15], s12")
    e("s_waitcnt lgkmcnt(0)")
    e("s_mov_b64 exec, s[14:15]")
    for i in range(8): e(f"v_add_f32 v{FN+i}, v{FN+i}, v{HN+i}"); e(f"v_add_f32 v{FD+i}, v{FD+i}, v{HD+i}")
    e("s_mov_b64 exec, s[24:25]")
    e("s_branch K2_FOLD")
    lab("K2_FOLDED")
    e("s_cmp_eq_u32 s6, 0"); e("s_cbranch_scc1 K2_FIN")
    for hh in range(2):
        e(f"ds_write_b128 v{t2}, {vr(FN+4*hh,4)} offset:{ACC_L+16*hh}"); e(f"ds_write_b128 v{t2}, {vr(FD+4*hh,4)} offset:{ACC_L+512+16*hh}")
    e("s_cmp_ge_u32 s8, 1"); e("s_cbranch_scc1 K2_NR")
    e(f"v_lshlrev_b32 v{t0}, 2, v{LANE}"); e(f"v_mov_b32 v{t3}, 0"); e(f"ds_write_b32 v{t0}, v{t3}")
    e(f"v_mov_b32 v{t0}, {FLAG_L}"); e(f"ds_write_b32 v{t0}, v{t3}")
    e("s_branch K2_NR")
    lab("K2_FSKIP")
    e("s_cmp_eq_u32 s6, 0"); e("s_cbranch_scc1 K2_DONE")
    lab("K2_NR")
    e("s_mov_b32 s31, 1")
    e("s_branch K2_ROUND")
    lab("K2_FIN")
    U = HN; XU = HD
    for hh in range(2): e(f"ds_read_b128 {vr(U+4*hh,4)}, v{FO} offset:{AL_L+16*hh}")
    for i in range(4):
        e(f"v_lshlrev_b32 v{XU+2*i}, 16, v{X+i}"); e(f"v_and_b32 v{XU+2*i+1}, 0xffff0000, v{X+i}")
    e("s_mov_b32 s10, 0x358637bd")
    for i in range(8): e(f"v_add_f32 v{FD+i}, s10, v{FD+i}")
    for i in range(8): e(f"v_rcp_f32 v{FD+i}, v{FD+i}")
    e("s_waitcnt lgkmcnt(0)")
    for i in range(8): e(f"v_lshlrev_b32 v{U+i}, 16, v{U+i}")
    for i in range(8): e(f"v_fma_f32 v{FN+i}, v{FN+i}, v{FD+i}, v{U+i}")
    for i in range(8):
        e(f"v_mul_f32 v{FD+i}, 0, v{FN+i}")
        e(f"v_cmp_gt_f32 vcc, v{FN+i}, 0")
        e("s_nop 1")
        e(f"v_cndmask_b32 v{FN+i}, v{FD+i}, v{FN+i}, vcc")
        e(f"v_add_f32 v{FN+i}, v{FN+i}, v{XU+i}")
    for i in range(4): e(f"v_cvt_pk_bf16_f32 v{T+i}, v{FN+2*i}, v{FN+2*i+1}")
    e("s_lshl_b32 s9, s5, 8"); e("s_lshl_b32 s12, s7, 8")
    srd(60, 46, 47, "s12", add=["s9"])
    e(f"v_lshlrev_b32 v{t3}, 4, v0")
    e(f"buffer_store_dwordx4 {vr(T,4)}, v{t3}, s[60:63], 0 offen")
    lab("K2_DONE")
    if STAMPS:
        e("s_waitcnt vmcnt(0)")
        stamp(6, 33, 60)
        stamp_flush(7, 33, 4, 1, 16, 40)
    lab("K2_END")
    e("s_endpgm")
    return NV

def kd(name, vgpr, sgpr):
    return f""".p2align 6
.amdhsa_kernel {name}
  .amdhsa_next_free_vgpr {vgpr}
  .amdhsa_next_free_sgpr {sgpr}
  .amdhsa_accum_offset {(vgpr + 3) // 4 * 4}
  .amdhsa_group_segment_fixed_size 0
  .amdhsa_kernarg_size 96
  .amdhsa_user_sgpr_count 2
  .amdhsa_user_sgpr_kernarg_segment_ptr 1
  .amdhsa_system_sgpr_workgroup_id_x 1
.end_amdhsa_kernel
"""

hdr = open("cdna_kernels/" + NAME + ".s.ref").read().split("; Override launch geometry")[0]
gen_k1(); nv = gen_k2()
out = hdr
out += "; @launch kernel=k1_kernel grid=(381,1,1) block=(256,1,1) lds=68608\n"
out += f"; @launch kernel=k2_kernel grid=(512,1,1) block=(1024,1,1) lds={K2_LDS}\n"
out += '.amdgcn_target "amdgcn-amd-amdhsa--gfx950"\n.text\n'
out += "\n".join(L) + "\n"
out += '.section .rodata,"a"\n' + kd("k1_kernel", 256, 96) + kd("k2_kernel", nv, 72)
dst = sys.argv[1] if len(sys.argv) > 1 else "cdna_kernels/" + NAME + ".s"
open(dst, "w").write(out)
print("wrote", dst, len(L), "lines; K2 LDS", K2_LDS, "vgpr", nv)
```

```python
import sys, os
N = 10000; E = 320000
NAME = "gather_scatter__edge_featured_mpnn_gatedgcn__graph"
T_OFF = 0
AU_OFF = 1256 * 4096
CELL_OFF = AU_OFF + 1250 * 4096
CELL_BYTES = 512 * 128 * 256
REC_OFF = CELL_OFF + CELL_BYTES
P = 125; CHUNK = 2560
REC_BYTES = P * CHUNK * 16
NL2E = 0xbfb8aa3b
BIG = 0x40000000
DUMMY_OFF = 10000 * 512
ENV = os.environ.get
STAMPS = ENV("STAMPS") == "1"
STAMP_OFF = 32 << 20
STT = ENV("STT", "nt"); STT = (" " + STT) if STT else ""
STR = ENV("STR", ""); STR = (" " + STR) if STR else ""
RING = int(ENV("RING", "4"))

L = []
def e(s): L.append("    " + s)
def lab(s): L.append(s + ":")
def vr(a, n): return f"v[{a}:{a+n-1}]"

def srd(s, lo, hi, size, add=None):
    if add is None:
        e(f"s_mov_b32 s{s}, s{lo}"); e(f"s_and_b32 s{s+1}, s{hi}, 0xffff")
    else:
        adds = add if isinstance(add, list) else [add]
        e(f"s_add_u32 s{s}, s{lo}, {adds[0]}"); e(f"s_addc_u32 s{s+1}, s{hi}, 0")
        for a in adds[1:]:
            e(f"s_add_u32 s{s}, s{s}, {a}"); e(f"s_addc_u32 s{s+1}, s{s+1}, 0")
        e(f"s_and_b32 s{s+1}, s{s+1}, 0xffff")
    e(f"s_mov_b32 s{s+2}, {size}"); e(f"s_mov_b32 s{s+3}, 0x20000")

K2MAP = [33, 34, 35, 36, 37, 56, 57, 58]
def sreg(sbase, idx): return K2MAP[idx] if sbase == 33 else sbase + idx
def stamp(idx, sbase, tmp):
    if not STAMPS: return
    e(f"s_memrealtime s[{tmp}:{tmp+1}]"); e("s_waitcnt lgkmcnt(0)"); e(f"s_mov_b32 s{sreg(sbase, idx)}, s{tmp}")
def stamp_flush(n, sbase, vS, kern, nwaves, sq):
    if not STAMPS: return
    e(f"v_mov_b32 v{vS}, 0")
    for i in range(n): e(f"v_writelane_b32 v{vS}, s{sreg(sbase, i)}, {i}")
    e(f"s_load_dwordx2 s[{sq}:{sq+1}], s[0:1], 88"); e("s_waitcnt lgkmcnt(0)")
    e(f"s_add_u32 s{sq}, s{sq}, {STAMP_OFF + kern * (4 << 20)}"); e(f"s_addc_u32 s{sq+1}, s{sq+1}, 0"); e(f"s_and_b32 s{sq+1}, s{sq+1}, 0xffff")
    e(f"s_mov_b32 s{sq+2}, 0x400000"); e(f"s_mov_b32 s{sq+3}, 0x20000")
    e(f"v_lshrrev_b32 v{vS+1}, 6, v0"); e("s_nop 0"); e(f"v_readfirstlane_b32 s{sq+4}, v{vS+1}")
    e(f"s_mul_i32 s{sq+5}, s2, {nwaves}"); e(f"s_add_u32 s{sq+4}, s{sq+4}, s{sq+5}"); e(f"s_lshl_b32 s{sq+4}, s{sq+4}, 8")
    e(f"v_and_b32 v{vS+1}, 63, v0"); e(f"v_lshlrev_b32 v{vS+1}, 2, v{vS+1}")
    e(f"buffer_store_dword v{vS}, v{vS+1}, s[{sq}:{sq+3}], s{sq+4} offen")

def wave_scan(v):
    for sh in (1, 2, 4, 8):
        e("s_nop 1")
        e(f"v_add_u32_dpp v{v}, v{v}, v{v} row_shr:{sh} row_mask:0xf bank_mask:0xf bound_ctrl:0")
    e("s_nop 1")
    e(f"v_add_u32_dpp v{v}, v{v}, v{v} row_bcast:15 row_mask:0xa bank_mask:0xf")
    e("s_nop 1")
    e(f"v_add_u32_dpp v{v}, v{v}, v{v} row_bcast:31 row_mask:0xc bank_mask:0xf")
    e("s_nop 1")

def load_kernargs():
    e("s_load_dwordx16 s[16:31], s[0:1], 0")
    e("s_load_dwordx8 s[32:39], s[0:1], 64")

def gen_k1():
    NG = 256
    L.append(".p2align 8"); L.append(".globl k1_kernel"); L.append(".type k1_kernel,@function"); lab("k1_kernel")
    e(f"s_cmp_ge_u32 s2, {NG + P}"); e("s_cbranch_scc1 K1_END2")
    load_kernargs()
    if STAMPS:
        for i in range(12): e(f"s_mov_b32 s{70+i}, 0")
    stamp(0, 70, 90)
    e(f"s_cmp_ge_u32 s2, {P}"); e("s_cbranch_scc1 K1_G")
    lab("K1_PART")
    if ENV("NOP"): e("s_branch K1_END")
    e("s_mov_b32 s3, s2")
    CEL, CNT, OVC = 0, 65536, 65536 + 2048
    e("v_lshlrev_b32 v1, 4, v0"); e("v_lshlrev_b32 v2, 2, v0"); e("v_lshlrev_b32 v7, 3, v0")
    e("v_mov_b32 v4, 0"); e("v_mov_b32 v5, 1"); e(f"v_add_u32 v3, {CNT}, v7"); e("v_mov_b32 v8, 0"); e("v_mov_b32 v9, 0")
    e("ds_write_b64 v3, v[8:9]"); e(f"v_mov_b32 v6, {OVC}"); e("ds_write_b32 v6, v4")
    e("s_mul_i32 s4, s3, 10240"); e("s_add_u32 s5, s4, 4096"); e("s_add_u32 s6, s4, 8192")
    e("s_mul_i32 s7, s3, 5120"); e("s_add_u32 s8, s7, 4096")
    e("s_waitcnt lgkmcnt(0)")
    e("s_barrier")
    DS, SS, ES, BK, AD, RK = 10, 20, 30, 40, 50, 60
    srd(40, 22, 23, E * 4)
    e(f"buffer_load_dwordx4 {vr(DS,4)}, v1, s[40:43], s4 offen"); e(f"buffer_load_dwordx4 {vr(DS+4,4)}, v1, s[40:43], s5 offen")
    e(f"buffer_load_dwordx2 {vr(DS+8,2)}, v7, s[40:43], s6 offen")
    srd(44, 20, 21, E * 4)
    e(f"buffer_load_dwordx4 {vr(SS,4)}, v1, s[44:47], s4 offen"); e(f"buffer_load_dwordx4 {vr(SS+4,4)}, v1, s[44:47], s5 offen")
    e(f"buffer_load_dwordx2 {vr(SS+8,2)}, v7, s[44:47], s6 offen")
    srd(48, 18, 19, E * 2)
    e(f"buffer_load_dwordx2 {vr(ES,2)}, v7, s[48:51], s7 offen"); e(f"buffer_load_dwordx2 {vr(ES+2,2)}, v7, s[48:51], s7 offen offset:2048")
    e(f"buffer_load_dword v{ES+4}, v2, s[48:51], s8 offen")
    srd(52, 38, 39, CELL_BYTES, add=CELL_OFF)
    srd(60, 38, 39, REC_BYTES, add=REC_OFF)
    e("s_mov_b32 s9, 219902336"); e("s_movk_i32 s10, 625"); e("s_mov_b32 s13, 0xffff0000")
    stamp(1, 70, 90)
    e("s_waitcnt vmcnt(6)")
    stamp(2, 70, 90)
    for k in range(10):
        e(f"v_mul_hi_u32 v{BK+k}, v{DS+k}, s9")
        e(f"v_lshl_add_u32 v{AD+k}, v{BK+k}, 2, v3") if False else None
        e(f"v_lshlrev_b32 v{AD+k}, 2, v{BK+k}"); e(f"v_add_u32 v{AD+k}, {CNT}, v{AD+k}")
        e(f"ds_add_rtn_u32 v{RK+k}, v{AD+k}, v5")
    for k in range(10):
        e(f"v_mul_lo_u32 v{AD+k}, v{BK+k}, s10")
        e(f"v_add_u32 v{AD+k}, 31, v{AD+k}")
        e(f"v_lshrrev_b32 v{AD+k}, 5, v{AD+k}")
        e(f"v_sub_u32 v{DS+k}, v{DS+k}, v{AD+k}")
    e("s_waitcnt vmcnt(0)")
    stamp(3, 70, 90)
    for k in range(10):
        j = k >> 1
        e(f"v_lshlrev_b32 v{84+2*k}, 9, v{SS+k}")
        e(f"v_lshlrev_b32 v{DS+k}, 2, v{DS+k}")
        if k & 1: e(f"v_and_or_b32 v{85+2*k}, v{ES+j}, s13, v{DS+k}")
        else: e(f"v_lshl_or_b32 v{85+2*k}, v{ES+j}, 16, v{DS+k}")
    e("s_mov_b64 s[22:23], exec"); e("s_mov_b64 s[20:21], 0")
    e("s_waitcnt lgkmcnt(0)")
    for k in range(10):
        e(f"v_lshlrev_b32 v{AD+k}, 7, v{BK+k}"); e(f"v_lshl_add_u32 v{AD+k}, v{RK+k}, 3, v{AD+k}")
        e(f"v_cmp_gt_u32 vcc, 15, v{RK+k}")
        e("s_andn2_b64 s[24:25], exec, vcc"); e("s_or_b64 s[20:21], s[20:21], s[24:25]")
        e("s_mov_b64 exec, vcc")
        e(f"ds_write_b64 v{AD+k}, {vr(84+2*k,2)} offset:8")
        e("s_mov_b64 exec, s[22:23]")
    e("s_cmp_eq_u64 s[20:21], 0"); e("s_cbranch_scc1 K1_NOOVF")
    e("s_mul_i32 s11, s3, %d" % (CHUNK * 16)); e("s_lshl_b32 s12, s3, 7"); e("s_add_u32 s12, s12, %d" % (16384 - 15 * 8))
    for k in range(10):
        e(f"v_cmp_le_u32 vcc, 15, v{RK+k}"); e(f"v_cmp_gt_u32 s[24:25], 31, v{RK+k}"); e("s_and_b64 s[26:27], vcc, s[24:25]")
        e("s_mov_b64 exec, s[26:27]"); e(f"s_cbranch_execz K1_OW{k}")
        e(f"v_lshlrev_b32 v70, 15, v{BK+k}"); e(f"v_lshl_add_u32 v70, v{RK+k}, 3, v70")
        e(f"buffer_store_dwordx2 {vr(84+2*k,2)}, v70, s[52:55], s12 offen")
        lab(f"K1_OW{k}")
        e("s_andn2_b64 exec, s[22:23], s[24:25]"); e(f"s_cbranch_execz K1_OV{k}")
        e(f"ds_add_rtn_u32 v70, v6, v5")
        e(f"v_mov_b32 v72, v{84+2*k}"); e(f"v_mov_b32 v73, v{85+2*k}"); e(f"v_mov_b32 v74, v{BK+k}"); e("v_mov_b32 v75, 0")
        e("s_waitcnt lgkmcnt(0)")
        e("v_lshlrev_b32 v70, 4, v70")
        e("buffer_store_dwordx4 v[72:75], v70, s[60:63], s11 offen")
        lab(f"K1_OV{k}")
        e("s_mov_b64 exec, s[22:23]")
    lab("K1_NOOVF")
    e("s_waitcnt lgkmcnt(0)"); e("s_barrier")
    stamp(5, 70, 90)
    e("v_lshrrev_b32 v12, 3, v0"); e("v_and_b32 v13, 7, v0")
    e(f"v_lshlrev_b32 v14, 2, v12"); e(f"v_add_u32 v14, {CNT}, v14")
    e("v_lshlrev_b32 v16, 4, v0")
    e("v_lshlrev_b32 v15, 15, v12"); e("v_lshl_add_u32 v15, v13, 4, v15")
    e("s_lshl_b32 s11, s3, 7")
    e("ds_read_b32 v17, v6")
    e("v_cmp_eq_u32 s[24:25], 0, v13")
    e("v_lshlrev_b32 v13, 1, v13")
    for half in range(2):
        for ps in range(8): e(f"ds_read_b32 v{20+ps}, v14 offset:{(half*8+ps)*128}")
        for ps in range(8): e(f"ds_read_b128 {vr(40+4*ps,4)}, v16 offset:{(half*8+ps)*4096}")
        for ps in range(8):
            e(f"s_waitcnt lgkmcnt({7-ps})")
            e(f"v_cndmask_b32 v{40+4*ps}, v{40+4*ps}, v{20+ps}, s[24:25]"); e(f"v_cndmask_b32 v{41+4*ps}, v{41+4*ps}, v17, s[24:25]")
            e(f"v_cmp_le_u32 vcc, v13, v{20+ps}")
            e("s_mov_b64 exec, vcc")
            e(f"buffer_store_dwordx4 {vr(40+4*ps,4)}, v15, s[52:55], s11 offen" + STR)
            e("s_mov_b64 exec, s[22:23]")
            e(f"s_add_u32 s11, s11, {32*32768}")
        if half == 0: e("s_nop 1")
    if ENV("WBL2"):
        e("s_waitcnt vmcnt(0)")
        e("buffer_wbl2 sc1")
    e("s_branch K1_END")
    lab("K1_G")
    if ENV("NOG"): e("s_branch K1_END")
    e("v_and_b32 v1, 63, v0"); e("v_lshrrev_b32 v2, 6, v0"); e("v_and_b32 v3, 15, v1"); e("v_readfirstlane_b32 s3, v2")
    e("v_lshrrev_b32 v4, 4, v1")
    e(f"s_sub_u32 s65, s2, {P}")
    e("s_and_b32 s4, s65, 1")
    e("s_lshr_b32 s5, s65, 1"); e("s_and_b32 s5, s5, 1")
    e("s_lshr_b32 s6, s65, 2")
    e("v_lshlrev_b32 v5, 11, v4"); e("v_lshl_add_u32 v5, v3, 3, v5")
    e("v_lshlrev_b32 v6, 8, v3"); e("v_lshl_add_u32 v6, v4, 4, v6")
    e("v_lshlrev_b32 v8, 4, v1")
    e("v_lshlrev_b32 v7, 11, v4"); e("v_lshl_add_u32 v7, v3, 4, v7")
    e("s_lshl_b32 s7, s6, 2"); e("s_add_u32 s7, s7, s3")
    e("s_lshl_b32 s8, s7, 12")
    e(f"s_add_u32 s9, s8, {256*4096}")
    e(f"s_add_u32 s10, s8, {512*4096}")
    e("s_lshl_b32 s11, s3, 13"); e("s_lshl_b32 s12, s4, 7"); e("s_add_u32 s11, s11, s12")
    e("s_waitcnt lgkmcnt(0)")
    XA, XB, LW, F, ACC, WF = 32, 48, 64, 96, 96, 128
    e("s_cmp_eq_u32 s5, 0")
    e("s_cselect_b32 s44, s26, s30"); e("s_cselect_b32 s45, s27, s31"); e("s_cselect_b32 s48, s32, s24"); e("s_cselect_b32 s49, s33, s25")
    e(f"s_mov_b32 s60, {NL2E:#x}")
    e("s_cselect_b32 s63, s60, 1.0"); e("s_cselect_b32 s64, 1.0, s60")
    e(f"s_mov_b32 s12, {AU_OFF}"); e("s_cselect_b32 s12, 0, s12")
    e("s_and_b32 s45, s45, 0xffff"); e("s_and_b32 s49, s49, 0xffff")
    e("s_mov_b32 s46, 32768"); e("s_mov_b32 s47, 0x20000"); e("s_mov_b32 s50, 32768"); e("s_mov_b32 s51, 0x20000")
    srd(40, 16, 17, N * 256)
    def grp(which):
        if which < 2:
            for i in range(8):
                e(f"buffer_load_dwordx2 {vr(LW+16*which+2*i,2)}, v5, s[{44+4*which}:{47+4*which}], s11 offen offset:{i*256}")
        else:
            for kk in range(4): e(f"buffer_load_dwordx4 {vr(XA+4*kk,4)}, v6, s[40:43], s8 offen offset:{kk*64}")
            for kk in range(4): e(f"buffer_load_dwordx4 {vr(XB+4*kk,4)}, v6, s[40:43], s9 offen offset:{kk*64}")
    if not ENV("ROT"):
        grp(0); grp(1); grp(2)
    else:
        e("s_cmp_eq_u32 s3, 1"); e("s_cbranch_scc1 K1_O1"); e("s_cmp_eq_u32 s3, 2"); e("s_cbranch_scc1 K1_O2")
        grp(0); grp(1); grp(2); e("s_branch K1_OD")
        lab("K1_O1"); grp(1); grp(2); grp(0); e("s_branch K1_OD")
        lab("K1_O2"); grp(2); grp(0); grp(1)
        lab("K1_OD")
    e("s_mov_b32 s13, 0x05040100"); e("s_mov_b32 s14, 0x07060302")
    e("s_mov_b32 s61, 0xffff0000"); e("s_mov_b32 s62, 0x80000000")
    e("s_lshl_b32 s15, s3, 12"); e("v_add_u32 v9, s15, v8")
    e("s_lshl_b32 s15, s4, 8")
    srd(52, 38, 39, 10001 * 512 - 256, add=["s12", "s15"])
    stamp(1, 70, 90)
    for m in range(2):
        e(f"s_waitcnt vmcnt({16 if m == 0 else 8})")
        for cc in range(4):
            for jj in range(4):
                lo = LW + 16*m + 2*(2*jj) + (cc >> 1); hi = LW + 16*m + 2*(2*jj+1) + (cc >> 1)
                e(f"v_perm_b32 v{F+4*cc+jj}, v{hi}, v{lo}, s{13 + (cc & 1)}")
            e(f"ds_write_b128 v9, {vr(F+4*cc,4)} offset:{m*16384 + cc*1024}")
    stamp(2, 70, 90)
    e("s_waitcnt lgkmcnt(0)"); e("s_barrier")
    for f in range(32):
        e(f"ds_read_b128 {vr(WF+4*f,4)}, v8 offset:{f*1024}")
    e("s_or_b32 s12, s7, s5"); e("s_cmp_eq_u32 s12, 0"); e("s_cbranch_scc0 K1_NODUMMY")
    e("v_mov_b32 v10, 0x7f80"); e("v_lshlrev_b32 v11, 2, v1")
    e(f"s_mov_b32 s12, {DUMMY_OFF}")
    e("buffer_store_dword v10, v11, s[52:55], s12 offen")
    lab("K1_NODUMMY")
    e("s_waitcnt vmcnt(5) lgkmcnt(0)") if False else e("s_waitcnt vmcnt(4) lgkmcnt(0)")
    stamp(3, 70, 90)
    def mf(half):
        o = []
        for kk in range(4):
            for m in range(2):
                for cc in (2*half, 2*half+1):
                    a_ = ACC + 4*(m*4+cc); w = WF + 4*((m*4+kk)*4+cc)
                    src = "0" if kk == 0 else vr(a_,4)
                    o.append(f"v_mfma_f32_16x16x32_bf16 {vr(a_,4)}, {vr(XA+4*kk,4)}, {vr(w,4)}, {src}")
        return o
    def ep(half):
        o = []
        for r in range(4):
            for cc in (2*half, 2*half+1):
                b_ = ACC + 4*cc + r; hv = ACC + 16 + 4*cc + r; p = 64 + 4*r + cc; t1 = 80 + (cc & 1) * 4; t2 = t1 + 1; t3 = t1 + 2
                o += [f"v_mul_f32 v{t1}, s63, v{b_}", f"v_mul_f32 v{t3}, s64, v{hv}", f"v_cvt_pk_bf16_f32 v{t2}, v{t1}, 0",
                      f"v_and_b32 v{p}, 0x7fffffff, v{t3}", f"v_add_u32 v{p}, 0x8000, v{p}", f"v_sub_u32 v{p}, v{p}, v{t2}",
                      f"v_max_i32 v{p}, 0, v{p}", f"v_and_or_b32 v{p}, v{p}, s61, v{t2}", f"v_and_or_b32 v{p}, v{t3}, s62, v{p}"]
        return o
    def interleave(M, V, lead):
        for x in M[:lead]: e(x)
        e("s_nop 7")
        rest = M[lead:]; n = len(rest); per = -(-len(V) // (n + 1)); vi = 0
        for i in range(n + 1):
            for x in V[vi:vi+per]: e(x)
            vi += per
            if i < n: e(rest[i])
    def stores():
        e("s_lshl_b32 s12, s8, 1")
        for r in range(4): e(f"buffer_store_dwordx4 {vr(64+4*r,4)}, v7, s[52:55], s12 offen offset:{r*512}" + STT)
    for x in mf(0): e(x)
    e("s_waitcnt vmcnt(0)")
    lab("K1_TILE")
    interleave(mf(1), ep(0), 2)
    e("s_waitcnt vmcnt(4)")
    for i in range(16): e(f"v_mov_b32 v{XA+i}, v{XB+i}")
    for kk in range(4): e(f"buffer_load_dwordx4 {vr(XB+4*kk,4)}, v6, s[40:43], s10 offen offset:{kk*64}")
    e("s_cmp_lt_u32 s9, %d" % (625 * 4096)); e("s_cbranch_scc0 K1_LAST")
    interleave(mf(0), ep(1), 1)
    stores()
    e("s_mov_b32 s8, s9"); e("s_mov_b32 s9, s10"); e(f"s_mov_b32 s10, {BIG:#x}")
    e("s_branch K1_TILE")
    lab("K1_LAST")
    for x in ep(1): e(x)
    stores()
    e("s_branch K1_END")
    lab("K1_END")
    if ENV("DELAY"):
        e("s_memrealtime s[90:91]"); e("s_waitcnt lgkmcnt(0)"); e(f"s_add_u32 s92, s90, {ENV('DELAY')}")
        lab("K1_DLY")
        e("s_memrealtime s[90:91]"); e("s_waitcnt lgkmcnt(0)"); e("s_sub_u32 s93, s92, s90"); e("s_cmp_gt_i32 s93, 0"); e("s_cbranch_scc1 K1_DLY")
    if STAMPS:
        stamp(6, 70, 90)
        e("s_waitcnt vmcnt(0)")
        stamp(8, 70, 90)
        stamp_flush(12, 70, 1, 0, 4, 84)
    lab("K1_END2")
    e("s_endpgm")

CNT_L = 0; FLAG_L = 256; HID_L = 320; ACC_L = 512; AL_L = ACC_L + 20 * 1024; REC_L = AL_L + 20 * 512; HEAD_L = REC_L + (3875 + 32) * 8 + 264
K2_LDS = HEAD_L + 16 * 1024
def gen_k2():
    L.append(".p2align 8"); L.append(".globl k2_kernel"); L.append(".type k2_kernel,@function"); lab("k2_kernel")
    e("s_cmp_ge_u32 s2, 512"); e("s_cbranch_scc1 K2_END")
    load_kernargs()
    LO16, RA, LANE, WC, A, NUM, DEN, T, VA, STP, INC, AOFF = 1, 2, 3, 4, 8, 12, 16, 20, 24, 25, 26, 27
    X, DSC = 28, 32
    assert RING in (4, 5)
    REC = 34; PB = 42
    RK_ = [34, 36, 38, 40, 32][:RING]; PK_ = [42, 46, 50, 54, 58][:RING]
    t0, t1, t2, t3, FO = 58, 59, 60, 61, 62
    NV = 64
    e("s_mov_b32 s3, s2")
    e("s_mul_i32 s6, s3, 625"); e("s_add_u32 s6, s6, 31"); e("s_lshr_b32 s5, s6, 5"); e("s_add_u32 s6, s6, 625"); e("s_lshr_b32 s6, s6, 5")
    e("s_sub_u32 s7, s6, s5")
    e(f"v_and_b32 v{LANE}, 63, v0"); e(f"v_lshrrev_b32 v{t0}, 6, v0"); e(f"v_and_b32 v{t1}, 31, v0"); e(f"v_readfirstlane_b32 s8, v{t0}")
    e(f"v_lshlrev_b32 v{LO16}, 4, v{t1}")
    if STAMPS: e("s_memrealtime s[70:71]"); e("s_waitcnt lgkmcnt(0)"); e("s_mov_b32 s15, s70")
    e(f"v_lshlrev_b32 v{VA}, 4, v0")
    e(f"v_lshlrev_b32 v{FO}, 5, v0")
    e(f"v_lshlrev_b32 v{t3}, 4, v0")
    for i in range(4): e(f"v_mov_b32 v{T+i}, 0")
    e(f"ds_write_b128 v{t3}, {vr(T,4)} offset:{ACC_L}")
    e("s_cmp_ge_u32 s8, 4"); e("s_cbranch_scc1 K2_Z1")
    e(f"ds_write_b128 v{t3}, {vr(T,4)} offset:{ACC_L+16384}")
    e("s_cmp_ge_u32 s8, 2"); e("s_cbranch_scc1 K2_Z1")
    e(f"v_lshlrev_b32 v{t2}, 2, v0"); e(f"ds_write_b32 v{t2}, v{T}")
    lab("K2_Z1")
    e("s_waitcnt lgkmcnt(0)")
    e("s_lshl_b32 s10, s3, 15"); srd(40, 38, 39, 32768, add=[CELL_OFF, "s10"])
    CR = REC; AUR = PB + 8
    e(f"buffer_load_dwordx4 {vr(CR,4)}, v{VA}, s[40:43], 0 offen")
    e("s_barrier")
    srd(68, 28, 29, 256)
    e(f"v_lshrrev_b32 v{t2}, 1, v{LO16}"); e(f"buffer_load_dwordx2 {vr(WC,2)}, v{t2}, s[68:71], 0 offen")
    e("s_cmp_ge_u32 s8, 5"); e("s_cbranch_scc1 K2_NOAU0")
    e("s_lshl_b32 s9, s5, 9"); e("s_lshl_b32 s12, s7, 9"); srd(48, 38, 39, "s12", add=[AU_OFF, "s9"])
    e(f"buffer_load_dwordx4 {vr(AUR,4)}, v{FO}, s[48:51], 0 offen"); e(f"buffer_load_dwordx4 {vr(AUR+4,4)}, v{FO}, s[48:51], 0 offen offset:16")
    lab("K2_NOAU0")
    e("s_mov_b32 s44, s16"); e("s_mov_b32 s45, s17"); e("s_mov_b32 s46, s34"); e("s_mov_b32 s47, s35")
    srd(64, 38, 39, 10001 * 512)
    e(f"s_mov_b32 s29, {NL2E:#x}"); e(f"s_mov_b32 s30, {BIG:#x}"); e("s_mov_b32 s31, 0"); e("s_mov_b32 s32, 0")
    e("s_mov_b64 s[24:25], exec")
    if STAMPS:
        e("s_mov_b32 s33, s15")
        for i in range(1, 8): e(f"s_mov_b32 s{K2MAP[i]}, 0")
    e(f"v_lshrrev_b32 v{t2}, 5, v{LANE}"); e(f"v_lshl_add_u32 v{AOFF}, v{t2}, 2, v{LO16}")
    e(f"v_and_b32 v{t1}, 7, v0"); e(f"v_lshlrev_b32 v{t1}, 1, v{t1}")
    e(f"v_add_u32 v{t0}, -1, v{t1}")
    e("v_cmp_gt_u32 vcc, %d, v0" % (P * 8)); e("s_mov_b64 s[26:27], vcc")
    e("s_cmp_ge_u32 s8, 5"); e("s_cbranch_scc1 K2_W1"); e("s_waitcnt vmcnt(3)"); e("s_branch K2_W2")
    lab("K2_W1"); e("s_waitcnt vmcnt(1)"); lab("K2_W2")
    stamp(1, 33, 60) if False else None
    e(f"v_mov_b32_dpp v{DSC}, v{CR} quad_perm:[0,0,0,0] row_mask:0xf bank_mask:0xf")
    e("s_nop 1")
    e(f"v_mov_b32_dpp v{DSC}, v{DSC} row_shr:4 row_mask:0xf bank_mask:0xa")
    e("s_nop 0")
    e(f"v_cndmask_b32 v{DSC}, 0, v{DSC}, s[26:27]")
    RK, DL, BS = PB, PB + 4, NUM
    e(f"v_cmp_lt_u32 s[16:17], v{t0}, v{DSC}"); e(f"v_cmp_lt_u32 s[18:19], v{t1}, v{DSC}")
    e("s_mov_b64 s[20:21], 0"); e("s_mov_b64 s[22:23], 0")
    e(f"v_cmp_lt_u32 vcc, 15, v{DSC}"); e("s_cbranch_vccz K2_HAVE")
    e(f"v_mov_b32_dpp v{DSC+1}, v{CR+1} quad_perm:[0,0,0,0] row_mask:0xf bank_mask:0xf")
    e("s_nop 1")
    e(f"v_mov_b32_dpp v{DSC+1}, v{DSC+1} row_shr:4 row_mask:0xf bank_mask:0xa")
    e("s_mov_b64 exec, vcc"); e("s_mov_b32 s10, 0x4000")
    e(f"buffer_load_dwordx4 {vr(CR+4,4)}, v{VA}, s[40:43], s10 offen")
    e("s_mov_b64 exec, s[24:25]")
    e(f"v_add_u32 v{t0}, 15, v{t1}"); e(f"v_cmp_lt_u32 s[20:21], v{t0}, v{DSC}"); e(f"v_add_u32 v{t0}, 16, v{t1}"); e(f"v_cmp_lt_u32 s[22:23], v{t0}, v{DSC}")
    e("s_waitcnt vmcnt(0)")
    e("s_branch K2_HAVE2")
    lab("K2_ROUND")
    srd(52, 38, 39, REC_BYTES, add=REC_OFF)
    e(f"v_lshlrev_b32 v{VA}, 4, v0"); e(f"v_and_b32 v{VA}, 0xffffff80, v{VA}")
    e(f"buffer_load_dwordx2 {vr(DSC,2)}, v{VA}, s[40:43], 0 offen")
    e("s_waitcnt vmcnt(0)")
    e("v_cmp_gt_u32 vcc, %d, v0" % (P * 8)); e("s_nop 1"); e(f"v_cndmask_b32 v{DSC}, 0, v{DSC}, vcc")
    e(f"v_lshrrev_b32 v{t2}, 3, v0"); e("s_movk_i32 s9, %d" % CHUNK); e(f"v_mul_lo_u32 v{t2}, v{t2}, s9")
    e(f"v_and_b32 v{t1}, 7, v0"); e(f"v_add_u32 v{t1}, s32, v{t1}")
    e(f"v_cmp_lt_u32 s[26:27], 31, v{DSC}")
    for it in range(4):
        e(f"v_add_u32 v{t0}, {8*it}, v{t1}")
        e(f"v_cmp_lt_u32 s[{16+2*it}:{17+2*it}], v{t0}, v{DSC+1}")
        e(f"s_and_b64 s[{16+2*it}:{17+2*it}], s[{16+2*it}:{17+2*it}], s[26:27]")
        e(f"v_add_lshl_u32 v{BS+it}, v{t2}, v{t0}, 4")
    for it in range(4):
        e(f"s_mov_b64 exec, s[{16+2*it}:{17+2*it}]")
        e(f"s_cbranch_execz K2_NOLD{it}")
        e(f"buffer_load_dwordx4 {vr(PB+4*it,4)}, v{BS+it}, s[52:55], 0 offen")
        lab(f"K2_NOLD{it}")
    e("s_mov_b64 exec, s[24:25]")
    e("s_add_u32 s32, s32, 32")
    e("s_waitcnt vmcnt(0) lgkmcnt(0)"); e("s_barrier")
    for it in range(4):
        e(f"v_cmp_eq_u32 vcc, s3, v{PB+4*it+2}")
        e(f"s_and_b64 s[{16+2*it}:{17+2*it}], s[{16+2*it}:{17+2*it}], vcc")
        e(f"v_mov_b32 v{CR+2*it}, v{PB+4*it}"); e(f"v_mov_b32 v{CR+2*it+1}, v{PB+4*it+1}")
    lab("K2_HAVE2")
    e(f"v_cmp_lt_u32 vcc, 31, v{DSC}"); e(f"v_cmp_lt_u32 s[26:27], s32, v{DSC+1}"); e("s_and_b64 vcc, vcc, s[26:27]")
    e("s_and_saveexec_b64 s[26:27], vcc"); e("s_cbranch_execz K2_NOFLAG2")
    e(f"v_mov_b32 v{t0}, 1"); e(f"v_mov_b32 v{t1}, {FLAG_L}"); e(f"ds_write_b32 v{t1}, v{t0}")
    lab("K2_NOFLAG2")
    e("s_mov_b64 exec, s[24:25]")
    lab("K2_HAVE")
    stamp(1, 33, 60)
    e(f"v_mov_b32 v{t0}, 1")
    e("s_or_b64 s[26:27], s[20:21], s[22:23]")
    for it in range(4):
        if it == 2: e("s_cmp_eq_u64 s[26:27], 0"); e("s_cbranch_scc1 K2_SK1")
        e(f"v_and_b32 v{DL+it}, 0x7c, v{CR+2*it+1}")
        e(f"s_mov_b64 exec, s[{16+2*it}:{17+2*it}]")
        e(f"ds_add_rtn_u32 v{RK+it}, v{DL+it}, v{t0} offset:{CNT_L}")
        e("s_mov_b64 exec, s[24:25]")
    lab("K2_SK1")
    e("s_waitcnt lgkmcnt(0)"); e("s_barrier")
    stamp(2, 33, 60)
    e(f"v_and_b32 v{t1}, 31, v{LANE}"); e(f"v_lshlrev_b32 v{t1}, 2, v{t1}")
    e(f"ds_read_b32 v{t0}, v{t1} offset:{CNT_L}"); e(f"v_mov_b32 v{t2}, {FLAG_L}"); e(f"ds_read_b32 v{t2}, v{t2}")
    e("s_waitcnt lgkmcnt(0)")
    e(f"v_add_u32 v{STP}, 1, v{t0}"); e(f"v_lshrrev_b32 v{STP}, 1, v{STP}"); e(f"v_mov_b32 v{INC}, v{STP}")
    e(f"v_readfirstlane_b32 s6, v{t2}")
    for sh in (1, 2, 4, 8):
        e("s_nop 1")
        e(f"v_add_u32_dpp v{INC}, v{INC}, v{INC} row_shr:{sh} row_mask:0xf bank_mask:0xf bound_ctrl:0")
    e("s_nop 1")
    e(f"v_add_u32_dpp v{INC}, v{INC}, v{INC} row_bcast:15 row_mask:0xa bank_mask:0xf")
    e("s_nop 1")
    e(f"v_sub_u32 v{t1}, v{INC}, v{STP}")
    e(f"v_readlane_b32 s9, v{INC}, 31")
    for it in range(4):
        if it == 2: e("s_cmp_eq_u64 s[26:27], 0"); e("s_cbranch_scc1 K2_SK2")
        e(f"ds_bpermute_b32 v{BS+it}, v{DL+it}, v{t1}")
    lab("K2_SK2")
    e("s_waitcnt lgkmcnt(0)")
    for it in range(4):
        if it == 2: e("s_cmp_eq_u64 s[26:27], 0"); e("s_cbranch_scc1 K2_SK3")
        e(f"v_lshl_add_u32 v{BS+it}, v{BS+it}, 1, v{RK+it}"); e(f"v_lshlrev_b32 v{BS+it}, 3, v{BS+it}")
        e(f"s_mov_b64 exec, s[{16+2*it}:{17+2*it}]")
        e(f"ds_write_b64 v{BS+it}, {vr(CR+2*it,2)} offset:{REC_L}")
        e("s_mov_b64 exec, s[24:25]")
    lab("K2_SK3")
    e("s_cmp_lg_u32 s8, 15"); e("s_cbranch_scc1 K2_NOPAD")
    e(f"v_lshl_add_u32 v{t1}, v{t1}, 1, v{t0}")
    e(f"v_and_b32 v{t2}, 1, v{t0}"); e(f"v_cmp_eq_u32 vcc, 1, v{t2}")
    e(f"v_mov_b32 v{RK}, {DUMMY_OFF}"); e(f"v_mov_b32 v{RK+1}, 0"); e(f"v_lshlrev_b32 v{DL}, 3, v{t1}")
    e("s_and_b32 vcc_hi, vcc_hi, 0")
    e("s_and_saveexec_b64 s[26:27], vcc"); e("s_cbranch_execz K2_NOPAD2")
    e(f"ds_write_b64 v{DL}, {vr(RK,2)} offset:{REC_L}")
    lab("K2_NOPAD2")
    e("s_mov_b64 exec, s[24:25]")
    lab("K2_NOPAD")
    e("s_cmp_lg_u32 s31, 0"); e("s_cbranch_scc1 K2_NOAU")
    e("s_cmp_ge_u32 s8, 5"); e("s_cbranch_scc1 K2_NOAL")
    e("s_lshl_b32 s10, s5, 8"); e("s_lshl_b32 s12, s7, 8")
    srd(52, 44, 45, "s12", add=["s10"])
    e("s_waitcnt vmcnt(0)")
    e(f"ds_write_b128 v{FO}, {vr(AUR,4)} offset:{AL_L}"); e(f"ds_write_b128 v{FO}, {vr(AUR+4,4)} offset:{AL_L+16}")
    e(f"v_lshlrev_b32 v{t3}, 4, v0"); e(f"buffer_load_dwordx4 {vr(X,4)}, v{t3}, s[52:55], 0 offen")
    e("s_branch K2_NOAL2")
    lab("K2_NOAL")
    e("s_waitcnt vmcnt(0)")
    lab("K2_NOAL2")
    e(f"v_and_b32 v{WC+3}, 0xffff0000, v{WC+1}"); e(f"v_lshlrev_b32 v{WC+2}, 16, v{WC+1}")
    e(f"v_and_b32 v{WC+1}, 0xffff0000, v{WC}"); e(f"v_lshlrev_b32 v{WC}, 16, v{WC}")
    for i in range(4): e(f"v_mul_f32 v{WC+i}, s29, v{WC+i}")
    lab("K2_NOAU")
    e("s_mov_b32 s16, 0x3f80"); e("s_mov_b32 s18, 1.0"); e("s_mov_b32 s19, 1.0")
    e("s_waitcnt lgkmcnt(0)"); e("s_barrier")
    stamp(3, 33, 60)
    REPEAT = int(ENV("REPEAT", "0"))
    if REPEAT: e(f"s_mov_b32 s33, {REPEAT}"); lab("K2_REP")
    D = RING - 1
    e("s_mul_i32 s10, s9, s8"); e("s_lshr_b32 s10, s10, 4")
    e("s_add_u32 s11, s8, 1"); e("s_mul_i32 s11, s9, s11"); e("s_lshr_b32 s11, s11, 4")
    e("s_sub_u32 s12, s11, s10")
    e("s_mov_b32 s17, -1")
    e("s_cmp_eq_u32 s12, 0"); e("s_cbranch_scc1 K2_MEND")
    if ENV("NOMAIN"): e("s_branch K2_MEND")
    e(f"v_cmp_ge_u32 vcc, s10, v{INC}"); e("s_bcnt1_i32_b32 s13, vcc_lo")
    e(f"v_readlane_b32 s14, v{INC}, s13"); e(f"v_readlane_b32 s11, v{STP}, s13")
    e("s_sub_u32 s14, s14, s10")
    e("s_lshl_b32 s20, s13, 10"); e(f"s_add_u32 s20, s20, {ACC_L}")
    e("s_mov_b32 s21, s31")
    e("s_cmp_eq_u32 s14, s11"); e("s_cbranch_scc1 K2_NOHEAD")
    e("s_mov_b32 s17, s13"); e("s_lshl_b32 s20, s8, 10"); e(f"s_add_u32 s20, s20, {HEAD_L}"); e("s_mov_b32 s21, 0")
    lab("K2_NOHEAD")
    e("s_min_u32 s14, s14, s12"); e("s_sub_u32 s15, s12, s14")
    e("s_sub_u32 s14, s14, 1")
    if ENV("PRIO", "1") == "1":
        e("s_lshr_b32 s48, s12, 2"); e("s_lshr_b32 s49, s12, 1"); e("s_add_u32 s50, s48, s49")
        e("s_setprio 3")
    e(f"v_lshrrev_b32 v{RA}, 5, v{LANE}"); e(f"v_lshlrev_b32 v{RA}, 3, v{RA}")
    e("s_lshl_b32 s10, s10, 4"); e(f"s_add_u32 s10, s10, {REC_L}"); e(f"v_add_u32 v{RA}, s10, v{RA}")
    for k in range(RING): e(f"ds_read_b64 {vr(RK_[k],2)}, v{RA} offset:{16*k}")
    e("s_lshl_b32 s10, s13, 9"); e(f"v_add_u32 v{VA}, s10, v{LO16}"); e(f"ds_read_b128 {vr(A,4)}, v{VA} offset:{AL_L}")
    for i in range(4): e(f"v_mov_b32 v{NUM+i}, 0"); e(f"v_mov_b32 v{DEN+i}, 0")
    e(f"v_add_u32 v{RA}, {16*RING}, v{RA}")
    e("s_waitcnt lgkmcnt(0)")
    for k in range(D):
        e(f"s_cmp_gt_u32 s12, {k}"); e("s_cselect_b32 s28, 0, s30")
        e(f"v_add_u32 v{VA}, v{RK_[k]}, v{LO16}")
        e(f"buffer_load_dwordx4 {vr(PK_[k],4)}, v{VA}, s[64:67], s28 offen")
    e(f"s_max_u32 s12, s12, {D}"); e(f"s_sub_u32 s12, s12, {D}")
    e("s_lshl_b32 s12, s12, 0")
    for k in range(RING):
        lab(f"K2_L{k}")
        r = RK_[k]; p = PK_[k]; kn = (k + D) % RING
        e(f"v_pk_fma_f32 {vr(T,2)}, {vr(r,2)}, {vr(WC,2)}, {vr(A,2)} op_sel:[1,0,0] op_sel_hi:[1,1,1]")
        e(f"v_pk_fma_f32 {vr(T+2,2)}, {vr(r,2)}, {vr(WC+2,2)}, {vr(A+2,2)} op_sel:[1,0,0] op_sel_hi:[1,1,1]")
        e("s_sub_u32 s12, s12, 1"); e("s_cselect_b32 s28, s30, s28")
        e("s_waitcnt lgkmcnt(0)")
        e(f"v_add_u32 v{VA}, v{RK_[kn]}, v{LO16}")
        if not ENV("NOLOAD"): e(f"buffer_load_dwordx4 {vr(PK_[kn],4)}, v{VA}, s[64:67], s28 offen")
        e(f"ds_read_b64 {vr(r,2)}, v{RA} offset:{16*k}")
        e(f"s_waitcnt vmcnt({ENV('VM', D)})")
        for i in range(4): e(f"v_dot2_f32_bf16 v{T+i}, v{p+i}, s16, v{T+i}")
        if not ENV("NOTRANS"):
            for i in range(4): e(f"v_exp_f32 v{T+i}, v{T+i}")
        e(f"v_pk_add_f32 {vr(T,2)}, {vr(T,2)}, s[18:19]"); e(f"v_pk_add_f32 {vr(T+2,2)}, {vr(T+2,2)}, s[18:19]")
        if not ENV("NOTRANS"):
            for i in range(4): e(f"v_rcp_f32 v{T+i}, v{T+i}")
        if k == RING - 1: e(f"v_add_u32 v{RA}, {16*RING}, v{RA}")
        e("s_sub_u32 s14, s14, 1")
        e(f"v_pk_add_f32 {vr(DEN,2)}, {vr(DEN,2)}, {vr(T,2)}")
        e(f"v_pk_fma_f32 {vr(NUM,2)}, {vr(T,2)}, {vr(p,2)}, {vr(NUM,2)}")
        e(f"v_pk_add_f32 {vr(DEN+2,2)}, {vr(DEN+2,2)}, {vr(T+2,2)}")
        e(f"v_pk_fma_f32 {vr(NUM+2,2)}, {vr(T+2,2)}, {vr(p+2,2)}, {vr(NUM+2,2)}")
        e(f"s_cbranch_scc0 K2_N{k}")
        e(f"s_movk_i32 s22, {(k+1) % RING}"); e("s_branch K2_FLUSH")
        lab(f"K2_N{k}")
    if ENV("PRIO", "1") == "1" and ENV("PRIO2", "0") == "1":
        e("s_cmp_gt_i32 s12, s50"); e("s_cbranch_scc1 K2_L0")
        e("s_setprio 2"); e("s_cmp_gt_i32 s12, s49"); e("s_cbranch_scc1 K2_L0")
        e("s_setprio 1"); e("s_cmp_gt_i32 s12, s48"); e("s_cbranch_scc1 K2_L0")
        e("s_setprio 0")
    e("s_branch K2_L0")
    lab("K2_FLUSH")
    if ENV("NOFLUSH"): e("s_branch K2_FSK")
    e("s_nop 0")
    e(f"v_permlane32_swap_b32 v{NUM}, v{NUM+1}"); e(f"v_permlane32_swap_b32 v{NUM+2}, v{NUM+3}")
    e(f"v_permlane32_swap_b32 v{DEN}, v{DEN+1}"); e(f"v_permlane32_swap_b32 v{DEN+2}, v{DEN+3}")
    e(f"v_add_u32 v{VA}, s20, v{AOFF}")
    e("s_nop 0")
    e(f"v_add_f32 v{NUM}, v{NUM}, v{NUM+1}"); e(f"v_add_f32 v{NUM+2}, v{NUM+2}, v{NUM+3}")
    e(f"v_add_f32 v{DEN}, v{DEN}, v{DEN+1}"); e(f"v_add_f32 v{DEN+2}, v{DEN+2}, v{DEN+3}")
    e("s_cmp_eq_u32 s21, 0"); e("s_cbranch_scc1 K2_FW")
    e(f"ds_read_b32 v{NUM+1}, v{VA}"); e(f"ds_read_b32 v{NUM+3}, v{VA} offset:8"); e(f"ds_read_b32 v{DEN+1}, v{VA} offset:512"); e(f"ds_read_b32 v{DEN+3}, v{VA} offset:520")
    e("s_waitcnt lgkmcnt(0)")
    e(f"v_add_f32 v{NUM}, v{NUM}, v{NUM+1}"); e(f"v_add_f32 v{NUM+2}, v{NUM+2}, v{NUM+3}")
    e(f"v_add_f32 v{DEN}, v{DEN}, v{DEN+1}"); e(f"v_add_f32 v{DEN+2}, v{DEN+2}, v{DEN+3}")
    lab("K2_FW")
    e(f"ds_write2_b32 v{VA}, v{NUM}, v{NUM+2} offset0:0 offset1:2"); e(f"ds_write2_b32 v{VA}, v{DEN}, v{DEN+2} offset0:128 offset1:130")
    lab("K2_FSK")
    e("s_cmp_eq_u32 s15, 0"); e("s_cbranch_scc1 K2_MEND")
    lab("K2_FN")
    e("s_add_u32 s13, s13, 1")
    e(f"v_readlane_b32 s14, v{STP}, s13")
    e("s_cmp_eq_u32 s14, 0"); e("s_cbranch_scc1 K2_FN")
    if ENV("PRIO", "1") == "1" and ENV("PRIO2", "0") != "1":
        e("s_cmp_gt_u32 s15, s50"); e("s_cbranch_scc1 K2_PD")
        e("s_setprio 2"); e("s_cmp_gt_u32 s15, s49"); e("s_cbranch_scc1 K2_PD")
        e("s_setprio 1"); e("s_cmp_gt_u32 s15, s48"); e("s_cbranch_scc1 K2_PD")
        e("s_setprio 0")
        lab("K2_PD")
    e("s_min_u32 s14, s14, s15"); e("s_sub_u32 s15, s15, s14"); e("s_sub_u32 s14, s14, 1")
    e("s_lshl_b32 s10, s13, 9"); e(f"v_add_u32 v{VA}, s10, v{LO16}"); e(f"ds_read_b128 {vr(A,4)}, v{VA} offset:{AL_L}")
    e("s_lshl_b32 s20, s13, 10"); e(f"s_add_u32 s20, s20, {ACC_L}"); e("s_mov_b32 s21, s31")
    for i in range(4): e(f"v_mov_b32 v{NUM+i}, 0"); e(f"v_mov_b32 v{DEN+i}, 0")
    e("s_waitcnt lgkmcnt(0)")
    for k in range(RING - 1):
        e(f"s_cmp_eq_u32 s22, {k}"); e(f"s_cbranch_scc1 K2_L{k}")
    e(f"s_branch K2_L{RING-1}")
    lab("K2_MEND")
    e("s_setprio 0")
    e("s_waitcnt vmcnt(0) lgkmcnt(0)")
    if REPEAT: e("s_sub_u32 s33, s33, 1"); e("s_cmp_lg_u32 s33, 0"); e("s_cbranch_scc1 K2_REP")
    e("s_lshl_b32 s10, s8, 2"); e(f"s_add_u32 s10, s10, {HID_L}"); e(f"v_mov_b32 v{t0}, s10"); e(f"v_mov_b32 v{t1}, s17")
    e(f"ds_write_b32 v{t0}, v{t1}")
    e("s_waitcnt lgkmcnt(0)")
    stamp(4, 33, 60)
    e("s_barrier")
    stamp(5, 33, 60)
    e("s_cmp_ge_u32 s8, 5"); e("s_cbranch_scc1 K2_FSKIP")
    FN, FD, HN, HD = REC, PB, PB + 8, NUM
    e(f"v_lshrrev_b32 v{t0}, 4, v0"); e(f"v_lshlrev_b32 v{t1}, 5, v0"); e(f"v_and_b32 v{t1}, 0x1e0, v{t1}")
    e(f"v_lshl_add_u32 v{t2}, v{t0}, 10, v{t1}")
    for hh in range(2):
        e(f"ds_read_b128 {vr(FN+4*hh,4)}, v{t2} offset:{ACC_L+16*hh}"); e(f"ds_read_b128 {vr(FD+4*hh,4)}, v{t2} offset:{ACC_L+512+16*hh}")
    e(f"v_and_b32 v{t3}, 15, v{LANE}"); e(f"v_lshlrev_b32 v{t3}, 2, v{t3}"); e(f"ds_read_b32 v{t3}, v{t3} offset:{HID_L}")
    e("s_waitcnt lgkmcnt(0)")
    e(f"v_lshrrev_b32 v{VA}, 2, v{t3}")
    e(f"v_cmp_eq_u32 vcc, s8, v{VA}")
    e("s_and_b32 s10, vcc_lo, 0xffff")
    lab("K2_FOLD")
    e("s_cmp_eq_u32 s10, 0"); e("s_cbranch_scc1 K2_FOLDED")
    e("s_ff1_i32_b32 s11, s10"); e("s_bitset0_b32 s10, s11")
    e(f"v_readlane_b32 s12, v{t3}, s11")
    e("s_lshl_b32 s13, s11, 10"); e(f"s_add_u32 s13, s13, {HEAD_L}"); e(f"v_add_u32 v{VA}, s13, v{t1}")
    for hh in range(2):
        e(f"ds_read_b128 {vr(HN+4*hh,4)}, v{VA} offset:{16*hh}"); e(f"ds_read_b128 {vr(HD+4*hh,4)}, v{VA} offset:{512+16*hh}")
    e("s_and_b32 s12, s12, 3"); e("s_lshl_b32 s12, s12, 4"); e("s_mov_b64 s[14:15], 0xffff"); e("s_lshl_b64 s[14:15], s[14:15], s12")
    e("s_waitcnt lgkmcnt(0)")
    e("s_mov_b64 exec, s[14:15]")
    for i in range(8): e(f"v_add_f32 v{FN+i}, v{FN+i}, v{HN+i}"); e(f"v_add_f32 v{FD+i}, v{FD+i}, v{HD+i}")
    e("s_mov_b64 exec, s[24:25]")
    e("s_branch K2_FOLD")
    lab("K2_FOLDED")
    e("s_cmp_eq_u32 s6, 0"); e("s_cbranch_scc1 K2_FIN")
    for hh in range(2):
        e(f"ds_write_b128 v{t2}, {vr(FN+4*hh,4)} offset:{ACC_L+16*hh}"); e(f"ds_write_b128 v{t2}, {vr(FD+4*hh,4)} offset:{ACC_L+512+16*hh}")
    e("s_cmp_ge_u32 s8, 1"); e("s_cbranch_scc1 K2_NR")
    e(f"v_lshlrev_b32 v{t0}, 2, v{LANE}"); e(f"v_mov_b32 v{t3}, 0"); e(f"ds_write_b32 v{t0}, v{t3}")
    e(f"v_mov_b32 v{t0}, {FLAG_L}"); e(f"ds_write_b32 v{t0}, v{t3}")
    e("s_branch K2_NR")
    lab("K2_FSKIP")
    e("s_cmp_eq_u32 s6, 0"); e("s_cbranch_scc1 K2_DONE")
    lab("K2_NR")
    e("s_mov_b32 s31, 1")
    e("s_branch K2_ROUND")
    lab("K2_FIN")
    U = HN; XU = HD
    for hh in range(2): e(f"ds_read_b128 {vr(U+4*hh,4)}, v{FO} offset:{AL_L+16*hh}")
    for i in range(4):
        e(f"v_lshlrev_b32 v{XU+2*i}, 16, v{X+i}"); e(f"v_and_b32 v{XU+2*i+1}, 0xffff0000, v{X+i}")
    e("s_mov_b32 s10, 0x358637bd")
    for i in range(8): e(f"v_add_f32 v{FD+i}, s10, v{FD+i}")
    for i in range(8): e(f"v_rcp_f32 v{FD+i}, v{FD+i}")
    e("s_waitcnt lgkmcnt(0)")
    for i in range(8): e(f"v_lshlrev_b32 v{U+i}, 16, v{U+i}")
    for i in range(8): e(f"v_fma_f32 v{FN+i}, v{FN+i}, v{FD+i}, v{U+i}")
    for i in range(8):
        e(f"v_mul_f32 v{FD+i}, 0, v{FN+i}")
        e(f"v_cmp_gt_f32 vcc, v{FN+i}, 0")
        e("s_nop 1")
        e(f"v_cndmask_b32 v{FN+i}, v{FD+i}, v{FN+i}, vcc")
        e(f"v_add_f32 v{FN+i}, v{FN+i}, v{XU+i}")
    for i in range(4): e(f"v_cvt_pk_bf16_f32 v{T+i}, v{FN+2*i}, v{FN+2*i+1}")
    e("s_lshl_b32 s9, s5, 8"); e("s_lshl_b32 s12, s7, 8")
    srd(60, 46, 47, "s12", add=["s9"])
    e(f"v_lshlrev_b32 v{t3}, 4, v0")
    e(f"buffer_store_dwordx4 {vr(T,4)}, v{t3}, s[60:63], 0 offen")
    lab("K2_DONE")
    if STAMPS:
        e("s_waitcnt vmcnt(0)")
        stamp(6, 33, 60)
        stamp_flush(7, 33, 4, 1, 16, 40)
    lab("K2_END")
    e("s_endpgm")
    return NV

def kd(name, vgpr, sgpr):
    return f""".p2align 6
.amdhsa_kernel {name}
  .amdhsa_next_free_vgpr {vgpr}
  .amdhsa_next_free_sgpr {sgpr}
  .amdhsa_accum_offset {(vgpr + 3) // 4 * 4}
  .amdhsa_group_segment_fixed_size 0
  .amdhsa_kernarg_size 96
  .amdhsa_user_sgpr_count 2
  .amdhsa_user_sgpr_kernarg_segment_ptr 1
  .amdhsa_system_sgpr_workgroup_id_x 1
.end_amdhsa_kernel
"""

hdr = open("cdna_kernels/" + NAME + ".s.ref").read().split("; Override launch geometry")[0]
gen_k1(); nv = gen_k2()
out = hdr
out += "; @launch kernel=k1_kernel grid=(381,1,1) block=(256,1,1) lds=68608\n"
out += f"; @launch kernel=k2_kernel grid=(512,1,1) block=(1024,1,1) lds={K2_LDS}\n"
out += '.amdgcn_target "amdgcn-amd-amdhsa--gfx950"\n.text\n'
out += "\n".join(L) + "\n"
out += '.section .rodata,"a"\n' + kd("k1_kernel", 256, 96) + kd("k2_kernel", nv, 72)
dst = sys.argv[1] if len(sys.argv) > 1 else "cdna_kernels/" + NAME + ".s"
open(dst, "w").write(out)
print("wrote", dst, len(L), "lines; K2 LDS", K2_LDS, "vgpr", nv)
```

```python
import sys, os
N = 10000; E = 320000
NAME = "gather_scatter__edge_featured_mpnn_gatedgcn__graph"
T_OFF = 0
AU_OFF = 1256 * 4096
CELL_OFF = AU_OFF + 1250 * 4096
CELL_BYTES = 512 * 128 * 256
REC_OFF = CELL_OFF + CELL_BYTES
P = 125; CHUNK = 2560
REC_BYTES = P * CHUNK * 16
NL2E = 0xbfb8aa3b
BIG = 0x40000000
DUMMY_OFF = 10000 * 512
ENV = os.environ.get
STAMPS = ENV("STAMPS") == "1"
STAMP_OFF = 32 << 20
STT = ENV("STT", "nt"); STT = (" " + STT) if STT else ""
STR = ENV("STR", ""); STR = (" " + STR) if STR else ""
RING = int(ENV("RING", "4"))

L = []
def e(s): L.append("    " + s)
def lab(s): L.append(s + ":")
def vr(a, n): return f"v[{a}:{a+n-1}]"

def srd(s, lo, hi, size, add=None):
    if add is None:
        e(f"s_mov_b32 s{s}, s{lo}"); e(f"s_and_b32 s{s+1}, s{hi}, 0xffff")
    else:
        adds = add if isinstance(add, list) else [add]
        e(f"s_add_u32 s{s}, s{lo}, {adds[0]}"); e(f"s_addc_u32 s{s+1}, s{hi}, 0")
        for a in adds[1:]:
            e(f"s_add_u32 s{s}, s{s}, {a}"); e(f"s_addc_u32 s{s+1}, s{s+1}, 0")
        e(f"s_and_b32 s{s+1}, s{s+1}, 0xffff")
    e(f"s_mov_b32 s{s+2}, {size}"); e(f"s_mov_b32 s{s+3}, 0x20000")

K2MAP = [33, 34, 35, 36, 37, 56, 57, 58]
def sreg(sbase, idx): return K2MAP[idx] if sbase == 33 else sbase + idx
def stamp(idx, sbase, tmp):
    if not STAMPS: return
    e(f"s_memrealtime s[{tmp}:{tmp+1}]"); e("s_waitcnt lgkmcnt(0)"); e(f"s_mov_b32 s{sreg(sbase, idx)}, s{tmp}")
def stamp_flush(n, sbase, vS, kern, nwaves, sq):
    if not STAMPS: return
    e(f"v_mov_b32 v{vS}, 0")
    for i in range(n): e(f"v_writelane_b32 v{vS}, s{sreg(sbase, i)}, {i}")
    e(f"s_load_dwordx2 s[{sq}:{sq+1}], s[0:1], 88"); e("s_waitcnt lgkmcnt(0)")
    e(f"s_add_u32 s{sq}, s{sq}, {STAMP_OFF + kern * (4 << 20)}"); e(f"s_addc_u32 s{sq+1}, s{sq+1}, 0"); e(f"s_and_b32 s{sq+1}, s{sq+1}, 0xffff")
    e(f"s_mov_b32 s{sq+2}, 0x400000"); e(f"s_mov_b32 s{sq+3}, 0x20000")
    e(f"v_lshrrev_b32 v{vS+1}, 6, v0"); e("s_nop 0"); e(f"v_readfirstlane_b32 s{sq+4}, v{vS+1}")
    e(f"s_mul_i32 s{sq+5}, s2, {nwaves}"); e(f"s_add_u32 s{sq+4}, s{sq+4}, s{sq+5}"); e(f"s_lshl_b32 s{sq+4}, s{sq+4}, 8")
    e(f"v_and_b32 v{vS+1}, 63, v0"); e(f"v_lshlrev_b32 v{vS+1}, 2, v{vS+1}")
    e(f"buffer_store_dword v{vS}, v{vS+1}, s[{sq}:{sq+3}], s{sq+4} offen")

def wave_scan(v):
    for sh in (1, 2, 4, 8):
        e("s_nop 1")
        e(f"v_add_u32_dpp v{v}, v{v}, v{v} row_shr:{sh} row_mask:0xf bank_mask:0xf bound_ctrl:0")
    e("s_nop 1")
    e(f"v_add_u32_dpp v{v}, v{v}, v{v} row_bcast:15 row_mask:0xa bank_mask:0xf")
    e("s_nop 1")
    e(f"v_add_u32_dpp v{v}, v{v}, v{v} row_bcast:31 row_mask:0xc bank_mask:0xf")
    e("s_nop 1")

def load_kernargs():
    e("s_load_dwordx16 s[16:31], s[0:1], 0")
    e("s_load_dwordx8 s[32:39], s[0:1], 64")

def gen_k1():
    NG = 256
    L.append(".p2align 8"); L.append(".globl k1_kernel"); L.append(".type k1_kernel,@function"); lab("k1_kernel")
    e(f"s_cmp_ge_u32 s2, {NG + P}"); e("s_cbranch_scc1 K1_END2")
    load_kernargs()
    if STAMPS:
        for i in range(12): e(f"s_mov_b32 s{70+i}, 0")
    stamp(0, 70, 90)
    e(f"s_cmp_ge_u32 s2, {P}"); e("s_cbranch_scc1 K1_G")
    lab("K1_PART")
    if ENV("NOP"): e("s_branch K1_END")
    e("s_mov_b32 s3, s2")
    CEL, CNT, OVC = 0, 65536, 65536 + 2048
    e("v_lshlrev_b32 v1, 4, v0"); e("v_lshlrev_b32 v2, 2, v0"); e("v_lshlrev_b32 v7, 3, v0")
    e("v_mov_b32 v4, 0"); e("v_mov_b32 v5, 1"); e(f"v_add_u32 v3, {CNT}, v7"); e("v_mov_b32 v8, 0"); e("v_mov_b32 v9, 0")
    e("ds_write_b64 v3, v[8:9]"); e(f"v_mov_b32 v6, {OVC}"); e("ds_write_b32 v6, v4")
    e("s_mul_i32 s4, s3, 10240"); e("s_add_u32 s5, s4, 4096"); e("s_add_u32 s6, s4, 8192")
    e("s_mul_i32 s7, s3, 5120"); e("s_add_u32 s8, s7, 4096")
    e("s_waitcnt lgkmcnt(0)")
    e("s_barrier")
    DS, SS, ES, BK, AD, RK = 10, 20, 30, 40, 50, 60
    srd(40, 22, 23, E * 4)
    e(f"buffer_load_dwordx4 {vr(DS,4)}, v1, s[40:43], s4 offen"); e(f"buffer_load_dwordx4 {vr(DS+4,4)}, v1, s[40:43], s5 offen")
    e(f"buffer_load_dwordx2 {vr(DS+8,2)}, v7, s[40:43], s6 offen")
    srd(44, 20, 21, E * 4)
    e(f"buffer_load_dwordx4 {vr(SS,4)}, v1, s[44:47], s4 offen"); e(f"buffer_load_dwordx4 {vr(SS+4,4)}, v1, s[44:47], s5 offen")
    e(f"buffer_load_dwordx2 {vr(SS+8,2)}, v7, s[44:47], s6 offen")
    srd(48, 18, 19, E * 2)
    e(f"buffer_load_dwordx2 {vr(ES,2)}, v7, s[48:51], s7 offen"); e(f"buffer_load_dwordx2 {vr(ES+2,2)}, v7, s[48:51], s7 offen offset:2048")
    e(f"buffer_load_dword v{ES+4}, v2, s[48:51], s8 offen")
    srd(52, 38, 39, CELL_BYTES, add=CELL_OFF)
    srd(60, 38, 39, REC_BYTES, add=REC_OFF)
    e("s_mov_b32 s9, 219902336"); e("s_movk_i32 s10, 625"); e("s_mov_b32 s13, 0xffff0000")
    stamp(1, 70, 90)
    e("s_waitcnt vmcnt(6)")
    stamp(2, 70, 90)
    for k in range(10):
        e(f"v_mul_hi_u32 v{BK+k}, v{DS+k}, s9")
        e(f"v_lshl_add_u32 v{AD+k}, v{BK+k}, 2, v3") if False else None
        e(f"v_lshlrev_b32 v{AD+k}, 2, v{BK+k}"); e(f"v_add_u32 v{AD+k}, {CNT}, v{AD+k}")
        e(f"ds_add_rtn_u32 v{RK+k}, v{AD+k}, v5")
    for k in range(10):
        e(f"v_mul_lo_u32 v{AD+k}, v{BK+k}, s10")
        e(f"v_add_u32 v{AD+k}, 31, v{AD+k}")
        e(f"v_lshrrev_b32 v{AD+k}, 5, v{AD+k}")
        e(f"v_sub_u32 v{DS+k}, v{DS+k}, v{AD+k}")
    e("s_waitcnt vmcnt(0)")
    stamp(3, 70, 90)
    for k in range(10):
        j = k >> 1
        e(f"v_lshlrev_b32 v{84+2*k}, 9, v{SS+k}")
        e(f"v_lshlrev_b32 v{DS+k}, 2, v{DS+k}")
        if k & 1: e(f"v_and_or_b32 v{85+2*k}, v{ES+j}, s13, v{DS+k}")
        else: e(f"v_lshl_or_b32 v{85+2*k}, v{ES+j}, 16, v{DS+k}")
    e("s_mov_b64 s[22:23], exec"); e("s_mov_b64 s[20:21], 0")
    e("s_waitcnt lgkmcnt(0)")
    for k in range(10):
        e(f"v_lshlrev_b32 v{AD+k}, 7, v{BK+k}"); e(f"v_lshl_add_u32 v{AD+k}, v{RK+k}, 3, v{AD+k}")
        e(f"v_cmp_gt_u32 vcc, 15, v{RK+k}")
        e("s_andn2_b64 s[24:25], exec, vcc"); e("s_or_b64 s[20:21], s[20:21], s[24:25]")
        e("s_mov_b64 exec, vcc")
        e(f"ds_write_b64 v{AD+k}, {vr(84+2*k,2)} offset:8")
        e("s_mov_b64 exec, s[22:23]")
    e("s_cmp_eq_u64 s[20:21], 0"); e("s_cbranch_scc1 K1_NOOVF")
    e("s_mul_i32 s11, s3, %d" % (CHUNK * 16)); e("s_lshl_b32 s12, s3, 7"); e("s_add_u32 s12, s12, %d" % (16384 - 15 * 8))
    for k in range(10):
        e(f"v_cmp_le_u32 vcc, 15, v{RK+k}"); e(f"v_cmp_gt_u32 s[24:25], 31, v{RK+k}"); e("s_and_b64 s[26:27], vcc, s[24:25]")
        e("s_mov_b64 exec, s[26:27]"); e(f"s_cbranch_execz K1_OW{k}")
        e(f"v_lshlrev_b32 v70, 15, v{BK+k}"); e(f"v_lshl_add_u32 v70, v{RK+k}, 3, v70")
        e(f"buffer_store_dwordx2 {vr(84+2*k,2)}, v70, s[52:55], s12 offen")
        lab(f"K1_OW{k}")
        e("s_andn2_b64 exec, s[22:23], s[24:25]"); e(f"s_cbranch_execz K1_OV{k}")
        e(f"ds_add_rtn_u32 v70, v6, v5")
        e(f"v_mov_b32 v72, v{84+2*k}"); e(f"v_mov_b32 v73, v{85+2*k}"); e(f"v_mov_b32 v74, v{BK+k}"); e("v_mov_b32 v75, 0")
        e("s_waitcnt lgkmcnt(0)")
        e("v_lshlrev_b32 v70, 4, v70")
        e("buffer_store_dwordx4 v[72:75], v70, s[60:63], s11 offen")
        lab(f"K1_OV{k}")
        e("s_mov_b64 exec, s[22:23]")
    lab("K1_NOOVF")
    e("s_waitcnt lgkmcnt(0)"); e("s_barrier")
    stamp(5, 70, 90)
    e("v_lshrrev_b32 v12, 3, v0"); e("v_and_b32 v13, 7, v0")
    e(f"v_lshlrev_b32 v14, 2, v12"); e(f"v_add_u32 v14, {CNT}, v14")
    e("v_lshlrev_b32 v16, 4, v0")
    e("v_lshlrev_b32 v15, 15, v12"); e("v_lshl_add_u32 v15, v13, 4, v15")
    e("s_lshl_b32 s11, s3, 7")
    e("ds_read_b32 v17, v6")
    e("v_cmp_eq_u32 s[24:25], 0, v13")
    e("v_lshlrev_b32 v13, 1, v13")
    for half in range(2):
        for ps in range(8): e(f"ds_read_b32 v{20+ps}, v14 offset:{(half*8+ps)*128}")
        for ps in range(8): e(f"ds_read_b128 {vr(40+4*ps,4)}, v16 offset:{(half*8+ps)*4096}")
        for ps in range(8):
            e(f"s_waitcnt lgkmcnt({7-ps})")
            e(f"v_cndmask_b32 v{40+4*ps}, v{40+4*ps}, v{20+ps}, s[24:25]"); e(f"v_cndmask_b32 v{41+4*ps}, v{41+4*ps}, v17, s[24:25]")
            e(f"v_cmp_le_u32 vcc, v13, v{20+ps}")
            e("s_mov_b64 exec, vcc")
            e(f"buffer_store_dwordx4 {vr(40+4*ps,4)}, v15, s[52:55], s11 offen" + STR)
            e("s_mov_b64 exec, s[22:23]")
            e(f"s_add_u32 s11, s11, {32*32768}")
        if half == 0: e("s_nop 1")
    if ENV("WBL2"):
        e("s_waitcnt vmcnt(0)")
        e("buffer_wbl2 sc1")
    e("s_branch K1_END")
    lab("K1_G")
    if ENV("NOG"): e("s_branch K1_END")
    e("v_and_b32 v1, 63, v0"); e("v_lshrrev_b32 v2, 6, v0"); e("v_and_b32 v3, 15, v1"); e("v_readfirstlane_b32 s3, v2")
    e("v_lshrrev_b32 v4, 4, v1")
    e(f"s_sub_u32 s65, s2, {P}")
    e("s_and_b32 s4, s65, 1")
    e("s_lshr_b32 s5, s65, 1"); e("s_and_b32 s5, s5, 1")
    e("s_lshr_b32 s6, s65, 2")
    e("v_lshlrev_b32 v5, 11, v4"); e("v_lshl_add_u32 v5, v3, 3, v5")
    e("v_lshlrev_b32 v6, 8, v3"); e("v_lshl_add_u32 v6, v4, 4, v6")
    e("v_lshlrev_b32 v8, 4, v1")
    e("v_lshlrev_b32 v7, 11, v4"); e("v_lshl_add_u32 v7, v3, 4, v7")
    e("s_lshl_b32 s7, s6, 2"); e("s_add_u32 s7, s7, s3")
    e("s_lshl_b32 s8, s7, 12")
    e(f"s_add_u32 s9, s8, {256*4096}")
    e(f"s_add_u32 s10, s8, {512*4096}")
    e("s_lshl_b32 s11, s3, 13"); e("s_lshl_b32 s12, s4, 7"); e("s_add_u32 s11, s11, s12")
    e("s_waitcnt lgkmcnt(0)")
    XA, XB, LW, F, ACC, WF = 32, 48, 64, 96, 96, 128
    e("s_cmp_eq_u32 s5, 0")
    e("s_cselect_b32 s44, s26, s30"); e("s_cselect_b32 s45, s27, s31"); e("s_cselect_b32 s48, s32, s24"); e("s_cselect_b32 s49, s33, s25")
    e(f"s_mov_b32 s60, {NL2E:#x}")
    e("s_cselect_b32 s63, s60, 1.0"); e("s_cselect_b32 s64, 1.0, s60")
    e(f"s_mov_b32 s12, {AU_OFF}"); e("s_cselect_b32 s12, 0, s12")
    e("s_and_b32 s45, s45, 0xffff"); e("s_and_b32 s49, s49, 0xffff")
    e("s_mov_b32 s46, 32768"); e("s_mov_b32 s47, 0x20000"); e("s_mov_b32 s50, 32768"); e("s_mov_b32 s51, 0x20000")
    srd(40, 16, 17, N * 256)
    def grp(which):
        if which < 2:
            for i in range(8):
                e(f"buffer_load_dwordx2 {vr(LW+16*which+2*i,2)}, v5, s[{44+4*which}:{47+4*which}], s11 offen offset:{i*256}")
        elif which == 2:
            for kk in range(4): e(f"buffer_load_dwordx4 {vr(XA+4*kk,4)}, v6, s[40:43], s8 offen offset:{kk*64}")
            for kk in range(4): e(f"buffer_load_dwordx4 {vr(XB+4*kk,4)}, v6, s[40:43], s9 offen offset:{kk*64}")
        elif which == 3:
            for kk in range(4): e(f"buffer_load_dwordx4 {vr(XA+4*kk,4)}, v6, s[40:43], s8 offen offset:{kk*64}")
        else:
            for kk in range(4): e(f"buffer_load_dwordx4 {vr(XB+4*kk,4)}, v6, s[40:43], s9 offen offset:{kk*64}")
    if ENV("XLATE", "1") in ("1", "2"):
        grp(0); grp(1)
    elif not ENV("ROT"):
        grp(0); grp(1); grp(2)
    else:
        e("s_cmp_eq_u32 s3, 1"); e("s_cbranch_scc1 K1_O1"); e("s_cmp_eq_u32 s3, 2"); e("s_cbranch_scc1 K1_O2")
        grp(0); grp(1); grp(2); e("s_branch K1_OD")
        lab("K1_O1"); grp(1); grp(2); grp(0); e("s_branch K1_OD")
        lab("K1_O2"); grp(2); grp(0); grp(1)
        lab("K1_OD")
    e("s_mov_b32 s13, 0x05040100"); e("s_mov_b32 s14, 0x07060302")
    e("s_mov_b32 s61, 0xffff0000"); e("s_mov_b32 s62, 0x80000000")
    e("s_lshl_b32 s15, s3, 12"); e("v_add_u32 v9, s15, v8")
    e("s_lshl_b32 s15, s4, 8")
    srd(52, 38, 39, 10001 * 512 - 256, add=["s12", "s15"])
    stamp(1, 70, 90)
    for m in range(2):
        if ENV("XLATE", "1") == "2":
            e(f"s_waitcnt vmcnt({8 if m == 0 else 4})")
            if m == 0: grp(3)
        elif ENV("XLATE", "1") == "1":
            e(f"s_waitcnt vmcnt({8 if m == 0 else 8})")
            if m == 0: grp(2)
        else:
            e(f"s_waitcnt vmcnt({16 if m == 0 else 8})")
        for cc in range(4):
            for jj in range(4):
                lo = LW + 16*m + 2*(2*jj) + (cc >> 1); hi = LW + 16*m + 2*(2*jj+1) + (cc >> 1)
                e(f"v_perm_b32 v{F+4*cc+jj}, v{hi}, v{lo}, s{13 + (cc & 1)}")
            e(f"ds_write_b128 v9, {vr(F+4*cc,4)} offset:{m*16384 + cc*1024}")
    stamp(2, 70, 90)
    e("s_waitcnt lgkmcnt(0)"); e("s_barrier")
    for f in range(32):
        e(f"ds_read_b128 {vr(WF+4*f,4)}, v8 offset:{f*1024}")
    if ENV("XLATE", "1") == "2": grp(4)
    e("s_or_b32 s12, s7, s5"); e("s_cmp_eq_u32 s12, 0"); e("s_cbranch_scc0 K1_NODUMMY")
    e("v_mov_b32 v10, 0x7f80"); e("v_lshlrev_b32 v11, 2, v1")
    e(f"s_mov_b32 s12, {DUMMY_OFF}")
    e("buffer_store_dword v10, v11, s[52:55], s12 offen")
    lab("K1_NODUMMY")
    e("s_waitcnt vmcnt(5) lgkmcnt(0)") if False else e("s_waitcnt vmcnt(4) lgkmcnt(0)")
    stamp(3, 70, 90)
    def mf(half):
        o = []
        for kk in range(4):
            for m in range(2):
                for cc in (2*half, 2*half+1):
                    a_ = ACC + 4*(m*4+cc); w = WF + 4*((m*4+kk)*4+cc)
                    src = "0" if kk == 0 else vr(a_,4)
                    o.append(f"v_mfma_f32_16x16x32_bf16 {vr(a_,4)}, {vr(XA+4*kk,4)}, {vr(w,4)}, {src}")
        return o
    def ep(half):
        o = []
        for r in range(4):
            for cc in (2*half, 2*half+1):
                b_ = ACC + 4*cc + r; hv = ACC + 16 + 4*cc + r; p = 64 + 4*r + cc; t1 = 80 + (cc & 1) * 4; t2 = t1 + 1; t3 = t1 + 2
                o += [f"v_mul_f32 v{t1}, s63, v{b_}", f"v_mul_f32 v{t3}, s64, v{hv}", f"v_cvt_pk_bf16_f32 v{t2}, v{t1}, 0",
                      f"v_and_b32 v{p}, 0x7fffffff, v{t3}", f"v_add_u32 v{p}, 0x8000, v{p}", f"v_sub_u32 v{p}, v{p}, v{t2}",
                      f"v_max_i32 v{p}, 0, v{p}", f"v_and_or_b32 v{p}, v{p}, s61, v{t2}", f"v_and_or_b32 v{p}, v{t3}, s62, v{p}"]
        return o
    def interleave(M, V, lead):
        for x in M[:lead]: e(x)
        e("s_nop 7")
        rest = M[lead:]; n = len(rest); per = -(-len(V) // (n + 1)); vi = 0
        for i in range(n + 1):
            for x in V[vi:vi+per]: e(x)
            vi += per
            if i < n: e(rest[i])
    def stores():
        e("s_lshl_b32 s12, s8, 1")
        for r in range(4): e(f"buffer_store_dwordx4 {vr(64+4*r,4)}, v7, s[52:55], s12 offen offset:{r*512}" + STT)
    for x in mf(0): e(x)
    e("s_waitcnt vmcnt(0)")
    lab("K1_TILE")
    interleave(mf(1), ep(0), 2)
    e("s_waitcnt vmcnt(4)")
    for i in range(16): e(f"v_mov_b32 v{XA+i}, v{XB+i}")
    for kk in range(4): e(f"buffer_load_dwordx4 {vr(XB+4*kk,4)}, v6, s[40:43], s10 offen offset:{kk*64}")
    e("s_cmp_lt_u32 s9, %d" % (625 * 4096)); e("s_cbranch_scc0 K1_LAST")
    interleave(mf(0), ep(1), 1)
    stores()
    e("s_mov_b32 s8, s9"); e("s_mov_b32 s9, s10"); e(f"s_mov_b32 s10, {BIG:#x}")
    e("s_branch K1_TILE")
    lab("K1_LAST")
    for x in ep(1): e(x)
    stores()
    e("s_branch K1_END")
    lab("K1_END")
    if ENV("DELAY"):
        e("s_memrealtime s[90:91]"); e("s_waitcnt lgkmcnt(0)"); e(f"s_add_u32 s92, s90, {ENV('DELAY')}")
        lab("K1_DLY")
        e("s_memrealtime s[90:91]"); e("s_waitcnt lgkmcnt(0)"); e("s_sub_u32 s93, s92, s90"); e("s_cmp_gt_i32 s93, 0"); e("s_cbranch_scc1 K1_DLY")
    if STAMPS:
        stamp(6, 70, 90)
        e("s_waitcnt vmcnt(0)")
        stamp(8, 70, 90)
        stamp_flush(12, 70, 1, 0, 4, 84)
    lab("K1_END2")
    e("s_endpgm")

CNT_L = 0; FLAG_L = 256; HID_L = 320; ACC_L = 512; AL_L = ACC_L + 20 * 1024; REC_L = AL_L + 20 * 512; HEAD_L = REC_L + (3875 + 32) * 8 + 264
K2_LDS = HEAD_L + 16 * 1024
def gen_k2():
    L.append(".p2align 8"); L.append(".globl k2_kernel"); L.append(".type k2_kernel,@function"); lab("k2_kernel")
    e("s_cmp_ge_u32 s2, 512"); e("s_cbranch_scc1 K2_END")
    load_kernargs()
    LO16, RA, LANE, WC, A, NUM, DEN, T, VA, STP, INC, AOFF = 1, 2, 3, 4, 8, 12, 16, 20, 24, 25, 26, 27
    X, DSC = 28, 32
    assert RING in (4, 5)
    REC = 34; PB = 42
    RK_ = [34, 36, 38, 40, 32][:RING]; PK_ = [42, 46, 50, 54, 58][:RING]
    t0, t1, t2, t3, FO = 58, 59, 60, 61, 62
    NV = 64
    e("s_mov_b32 s3, s2")
    e("s_mul_i32 s6, s3, 625"); e("s_add_u32 s6, s6, 31"); e("s_lshr_b32 s5, s6, 5"); e("s_add_u32 s6, s6, 625"); e("s_lshr_b32 s6, s6, 5")
    e("s_sub_u32 s7, s6, s5")
    e(f"v_and_b32 v{LANE}, 63, v0"); e(f"v_lshrrev_b32 v{t0}, 6, v0"); e(f"v_and_b32 v{t1}, 31, v0"); e(f"v_readfirstlane_b32 s8, v{t0}")
    e(f"v_lshlrev_b32 v{LO16}, 4, v{t1}")
    if STAMPS: e("s_memrealtime s[70:71]"); e("s_waitcnt lgkmcnt(0)"); e("s_mov_b32 s15, s70")
    e(f"v_lshlrev_b32 v{VA}, 4, v0")
    e(f"v_lshlrev_b32 v{FO}, 5, v0")
    e(f"v_lshlrev_b32 v{t3}, 4, v0")
    for i in range(4): e(f"v_mov_b32 v{T+i}, 0")
    e(f"ds_write_b128 v{t3}, {vr(T,4)} offset:{ACC_L}")
    e("s_cmp_ge_u32 s8, 4"); e("s_cbranch_scc1 K2_Z1")
    e(f"ds_write_b128 v{t3}, {vr(T,4)} offset:{ACC_L+16384}")
    e("s_cmp_ge_u32 s8, 2"); e("s_cbranch_scc1 K2_Z1")
    e(f"v_lshlrev_b32 v{t2}, 2, v0"); e(f"ds_write_b32 v{t2}, v{T}")
    lab("K2_Z1")
    e("s_waitcnt lgkmcnt(0)")
    e("s_lshl_b32 s10, s3, 15"); srd(40, 38, 39, 32768, add=[CELL_OFF, "s10"])
    CR = REC; AUR = PB + 8
    e(f"buffer_load_dwordx4 {vr(CR,4)}, v{VA}, s[40:43], 0 offen")
    e("s_barrier")
    srd(68, 28, 29, 256)
    e(f"v_lshrrev_b32 v{t2}, 1, v{LO16}"); e(f"buffer_load_dwordx2 {vr(WC,2)}, v{t2}, s[68:71], 0 offen")
    e("s_cmp_ge_u32 s8, 5"); e("s_cbranch_scc1 K2_NOAU0")
    e("s_lshl_b32 s9, s5, 9"); e("s_lshl_b32 s12, s7, 9"); srd(48, 38, 39, "s12", add=[AU_OFF, "s9"])
    e(f"buffer_load_dwordx4 {vr(AUR,4)}, v{FO}, s[48:51], 0 offen"); e(f"buffer_load_dwordx4 {vr(AUR+4,4)}, v{FO}, s[48:51], 0 offen offset:16")
    lab("K2_NOAU0")
    e("s_mov_b32 s44, s16"); e("s_mov_b32 s45, s17"); e("s_mov_b32 s46, s34"); e("s_mov_b32 s47, s35")
    srd(64, 38, 39, 10001 * 512)
    e(f"s_mov_b32 s29, {NL2E:#x}"); e(f"s_mov_b32 s30, {BIG:#x}"); e("s_mov_b32 s31, 0"); e("s_mov_b32 s32, 0")
    e("s_mov_b64 s[24:25], exec")
    if STAMPS:
        e("s_mov_b32 s33, s15")
        for i in range(1, 8): e(f"s_mov_b32 s{K2MAP[i]}, 0")
    e(f"v_lshrrev_b32 v{t2}, 5, v{LANE}"); e(f"v_lshl_add_u32 v{AOFF}, v{t2}, 2, v{LO16}")
    e(f"v_and_b32 v{t1}, 7, v0"); e(f"v_lshlrev_b32 v{t1}, 1, v{t1}")
    e(f"v_add_u32 v{t0}, -1, v{t1}")
    e("v_cmp_gt_u32 vcc, %d, v0" % (P * 8)); e("s_mov_b64 s[26:27], vcc")
    e("s_cmp_ge_u32 s8, 5"); e("s_cbranch_scc1 K2_W1"); e("s_waitcnt vmcnt(3)"); e("s_branch K2_W2")
    lab("K2_W1"); e("s_waitcnt vmcnt(1)"); lab("K2_W2")
    stamp(1, 33, 60) if False else None
    e(f"v_mov_b32_dpp v{DSC}, v{CR} quad_perm:[0,0,0,0] row_mask:0xf bank_mask:0xf")
    e("s_nop 1")
    e(f"v_mov_b32_dpp v{DSC}, v{DSC} row_shr:4 row_mask:0xf bank_mask:0xa")
    e("s_nop 0")
    e(f"v_cndmask_b32 v{DSC}, 0, v{DSC}, s[26:27]")
    RK, DL, BS = PB, PB + 4, NUM
    e(f"v_cmp_lt_u32 s[16:17], v{t0}, v{DSC}"); e(f"v_cmp_lt_u32 s[18:19], v{t1}, v{DSC}")
    e("s_mov_b64 s[20:21], 0"); e("s_mov_b64 s[22:23], 0")
    e(f"v_cmp_lt_u32 vcc, 15, v{DSC}"); e("s_cbranch_vccz K2_HAVE")
    e(f"v_mov_b32_dpp v{DSC+1}, v{CR+1} quad_perm:[0,0,0,0] row_mask:0xf bank_mask:0xf")
    e("s_nop 1")
    e(f"v_mov_b32_dpp v{DSC+1}, v{DSC+1} row_shr:4 row_mask:0xf bank_mask:0xa")
    e("s_mov_b64 exec, vcc"); e("s_mov_b32 s10, 0x4000")
    e(f"buffer_load_dwordx4 {vr(CR+4,4)}, v{VA}, s[40:43], s10 offen")
    e("s_mov_b64 exec, s[24:25]")
    e(f"v_add_u32 v{t0}, 15, v{t1}"); e(f"v_cmp_lt_u32 s[20:21], v{t0}, v{DSC}"); e(f"v_add_u32 v{t0}, 16, v{t1}"); e(f"v_cmp_lt_u32 s[22:23], v{t0}, v{DSC}")
    e("s_waitcnt vmcnt(0)")
    e("s_branch K2_HAVE2")
    lab("K2_ROUND")
    srd(52, 38, 39, REC_BYTES, add=REC_OFF)
    e(f"v_lshlrev_b32 v{VA}, 4, v0"); e(f"v_and_b32 v{VA}, 0xffffff80, v{VA}")
    e(f"buffer_load_dwordx2 {vr(DSC,2)}, v{VA}, s[40:43], 0 offen")
    e("s_waitcnt vmcnt(0)")
    e("v_cmp_gt_u32 vcc, %d, v0" % (P * 8)); e("s_nop 1"); e(f"v_cndmask_b32 v{DSC}, 0, v{DSC}, vcc")
    e(f"v_lshrrev_b32 v{t2}, 3, v0"); e("s_movk_i32 s9, %d" % CHUNK); e(f"v_mul_lo_u32 v{t2}, v{t2}, s9")
    e(f"v_and_b32 v{t1}, 7, v0"); e(f"v_add_u32 v{t1}, s32, v{t1}")
    e(f"v_cmp_lt_u32 s[26:27], 31, v{DSC}")
    for it in range(4):
        e(f"v_add_u32 v{t0}, {8*it}, v{t1}")
        e(f"v_cmp_lt_u32 s[{16+2*it}:{17+2*it}], v{t0}, v{DSC+1}")
        e(f"s_and_b64 s[{16+2*it}:{17+2*it}], s[{16+2*it}:{17+2*it}], s[26:27]")
        e(f"v_add_lshl_u32 v{BS+it}, v{t2}, v{t0}, 4")
    for it in range(4):
        e(f"s_mov_b64 exec, s[{16+2*it}:{17+2*it}]")
        e(f"s_cbranch_execz K2_NOLD{it}")
        e(f"buffer_load_dwordx4 {vr(PB+4*it,4)}, v{BS+it}, s[52:55], 0 offen")
        lab(f"K2_NOLD{it}")
    e("s_mov_b64 exec, s[24:25]")
    e("s_add_u32 s32, s32, 32")
    e("s_waitcnt vmcnt(0) lgkmcnt(0)"); e("s_barrier")
    for it in range(4):
        e(f"v_cmp_eq_u32 vcc, s3, v{PB+4*it+2}")
        e(f"s_and_b64 s[{16+2*it}:{17+2*it}], s[{16+2*it}:{17+2*it}], vcc")
        e(f"v_mov_b32 v{CR+2*it}, v{PB+4*it}"); e(f"v_mov_b32 v{CR+2*it+1}, v{PB+4*it+1}")
    lab("K2_HAVE2")
    e(f"v_cmp_lt_u32 vcc, 31, v{DSC}"); e(f"v_cmp_lt_u32 s[26:27], s32, v{DSC+1}"); e("s_and_b64 vcc, vcc, s[26:27]")
    e("s_and_saveexec_b64 s[26:27], vcc"); e("s_cbranch_execz K2_NOFLAG2")
    e(f"v_mov_b32 v{t0}, 1"); e(f"v_mov_b32 v{t1}, {FLAG_L}"); e(f"ds_write_b32 v{t1}, v{t0}")
    lab("K2_NOFLAG2")
    e("s_mov_b64 exec, s[24:25]")
    lab("K2_HAVE")
    stamp(1, 33, 60)
    e(f"v_mov_b32 v{t0}, 1")
    e("s_or_b64 s[26:27], s[20:21], s[22:23]")
    for it in range(4):
        if it == 2: e("s_cmp_eq_u64 s[26:27], 0"); e("s_cbranch_scc1 K2_SK1")
        e(f"v_and_b32 v{DL+it}, 0x7c, v{CR+2*it+1}")
        e(f"s_mov_b64 exec, s[{16+2*it}:{17+2*it}]")
        e(f"ds_add_rtn_u32 v{RK+it}, v{DL+it}, v{t0} offset:{CNT_L}")
        e("s_mov_b64 exec, s[24:25]")
    lab("K2_SK1")
    e("s_waitcnt lgkmcnt(0)"); e("s_barrier")
    stamp(2, 33, 60)
    e(f"v_and_b32 v{t1}, 31, v{LANE}"); e(f"v_lshlrev_b32 v{t1}, 2, v{t1}")
    e(f"ds_read_b32 v{t0}, v{t1} offset:{CNT_L}"); e(f"v_mov_b32 v{t2}, {FLAG_L}"); e(f"ds_read_b32 v{t2}, v{t2}")
    e("s_waitcnt lgkmcnt(0)")
    e(f"v_add_u32 v{STP}, 1, v{t0}"); e(f"v_lshrrev_b32 v{STP}, 1, v{STP}"); e(f"v_mov_b32 v{INC}, v{STP}")
    e(f"v_readfirstlane_b32 s6, v{t2}")
    for sh in (1, 2, 4, 8):
        e("s_nop 1")
        e(f"v_add_u32_dpp v{INC}, v{INC}, v{INC} row_shr:{sh} row_mask:0xf bank_mask:0xf bound_ctrl:0")
    e("s_nop 1")
    e(f"v_add_u32_dpp v{INC}, v{INC}, v{INC} row_bcast:15 row_mask:0xa bank_mask:0xf")
    e("s_nop 1")
    e(f"v_sub_u32 v{t1}, v{INC}, v{STP}")
    e(f"v_readlane_b32 s9, v{INC}, 31")
    for it in range(4):
        if it == 2: e("s_cmp_eq_u64 s[26:27], 0"); e("s_cbranch_scc1 K2_SK2")
        e(f"ds_bpermute_b32 v{BS+it}, v{DL+it}, v{t1}")
    lab("K2_SK2")
    e("s_waitcnt lgkmcnt(0)")
    for it in range(4):
        if it == 2: e("s_cmp_eq_u64 s[26:27], 0"); e("s_cbranch_scc1 K2_SK3")
        e(f"v_lshl_add_u32 v{BS+it}, v{BS+it}, 1, v{RK+it}"); e(f"v_lshlrev_b32 v{BS+it}, 3, v{BS+it}")
        e(f"s_mov_b64 exec, s[{16+2*it}:{17+2*it}]")
        e(f"ds_write_b64 v{BS+it}, {vr(CR+2*it,2)} offset:{REC_L}")
        e("s_mov_b64 exec, s[24:25]")
    lab("K2_SK3")
    e("s_cmp_lg_u32 s8, 15"); e("s_cbranch_scc1 K2_NOPAD")
    e(f"v_lshl_add_u32 v{t1}, v{t1}, 1, v{t0}")
    e(f"v_and_b32 v{t2}, 1, v{t0}"); e(f"v_cmp_eq_u32 vcc, 1, v{t2}")
    e(f"v_mov_b32 v{RK}, {DUMMY_OFF}"); e(f"v_mov_b32 v{RK+1}, 0"); e(f"v_lshlrev_b32 v{DL}, 3, v{t1}")
    e("s_and_b32 vcc_hi, vcc_hi, 0")
    e("s_and_saveexec_b64 s[26:27], vcc"); e("s_cbranch_execz K2_NOPAD2")
    e(f"ds_write_b64 v{DL}, {vr(RK,2)} offset:{REC_L}")
    lab("K2_NOPAD2")
    e("s_mov_b64 exec, s[24:25]")
    lab("K2_NOPAD")
    e("s_cmp_lg_u32 s31, 0"); e("s_cbranch_scc1 K2_NOAU")
    e("s_cmp_ge_u32 s8, 5"); e("s_cbranch_scc1 K2_NOAL")
    e("s_lshl_b32 s10, s5, 8"); e("s_lshl_b32 s12, s7, 8")
    srd(52, 44, 45, "s12", add=["s10"])
    e("s_waitcnt vmcnt(0)")
    e(f"ds_write_b128 v{FO}, {vr(AUR,4)} offset:{AL_L}"); e(f"ds_write_b128 v{FO}, {vr(AUR+4,4)} offset:{AL_L+16}")
    e(f"v_lshlrev_b32 v{t3}, 4, v0"); e(f"buffer_load_dwordx4 {vr(X,4)}, v{t3}, s[52:55], 0 offen")
    e("s_branch K2_NOAL2")
    lab("K2_NOAL")
    e("s_waitcnt vmcnt(0)")
    lab("K2_NOAL2")
    e(f"v_and_b32 v{WC+3}, 0xffff0000, v{WC+1}"); e(f"v_lshlrev_b32 v{WC+2}, 16, v{WC+1}")
    e(f"v_and_b32 v{WC+1}, 0xffff0000, v{WC}"); e(f"v_lshlrev_b32 v{WC}, 16, v{WC}")
    for i in range(4): e(f"v_mul_f32 v{WC+i}, s29, v{WC+i}")
    lab("K2_NOAU")
    e("s_mov_b32 s16, 0x3f80"); e("s_mov_b32 s18, 1.0"); e("s_mov_b32 s19, 1.0")
    e("s_waitcnt lgkmcnt(0)"); e("s_barrier")
    stamp(3, 33, 60)
    REPEAT = int(ENV("REPEAT", "0"))
    if REPEAT: e(f"s_mov_b32 s33, {REPEAT}"); lab("K2_REP")
    D = RING - 1
    e("s_mul_i32 s10, s9, s8"); e("s_lshr_b32 s10, s10, 4")
    e("s_add_u32 s11, s8, 1"); e("s_mul_i32 s11, s9, s11"); e("s_lshr_b32 s11, s11, 4")
    e("s_sub_u32 s12, s11, s10")
    e("s_mov_b32 s17, -1")
    e("s_cmp_eq_u32 s12, 0"); e("s_cbranch_scc1 K2_MEND")
    if ENV("NOMAIN"): e("s_branch K2_MEND")
    e(f"v_cmp_ge_u32 vcc, s10, v{INC}"); e("s_bcnt1_i32_b32 s13, vcc_lo")
    e(f"v_readlane_b32 s14, v{INC}, s13"); e(f"v_readlane_b32 s11, v{STP}, s13")
    e("s_sub_u32 s14, s14, s10")
    e("s_lshl_b32 s20, s13, 10"); e(f"s_add_u32 s20, s20, {ACC_L}")
    e("s_mov_b32 s21, s31")
    e("s_cmp_eq_u32 s14, s11"); e("s_cbranch_scc1 K2_NOHEAD")
    e("s_mov_b32 s17, s13"); e("s_lshl_b32 s20, s8, 10"); e(f"s_add_u32 s20, s20, {HEAD_L}"); e("s_mov_b32 s21, 0")
    lab("K2_NOHEAD")
    e("s_min_u32 s14, s14, s12"); e("s_sub_u32 s15, s12, s14")
    e("s_sub_u32 s14, s14, 1")
    if ENV("PRIO", "1") == "1":
        e("s_lshr_b32 s48, s12, 2"); e("s_lshr_b32 s49, s12, 1"); e("s_add_u32 s50, s48, s49")
        e("s_setprio 3")
    e(f"v_lshrrev_b32 v{RA}, 5, v{LANE}"); e(f"v_lshlrev_b32 v{RA}, 3, v{RA}")
    e("s_lshl_b32 s10, s10, 4"); e(f"s_add_u32 s10, s10, {REC_L}"); e(f"v_add_u32 v{RA}, s10, v{RA}")
    for k in range(RING): e(f"ds_read_b64 {vr(RK_[k],2)}, v{RA} offset:{16*k}")
    e("s_lshl_b32 s10, s13, 9"); e(f"v_add_u32 v{VA}, s10, v{LO16}"); e(f"ds_read_b128 {vr(A,4)}, v{VA} offset:{AL_L}")
    for i in range(4): e(f"v_mov_b32 v{NUM+i}, 0"); e(f"v_mov_b32 v{DEN+i}, 0")
    e(f"v_add_u32 v{RA}, {16*RING}, v{RA}")
    e("s_waitcnt lgkmcnt(0)")
    for k in range(D):
        e(f"s_cmp_gt_u32 s12, {k}"); e("s_cselect_b32 s28, 0, s30")
        e(f"v_add_u32 v{VA}, v{RK_[k]}, v{LO16}")
        e(f"buffer_load_dwordx4 {vr(PK_[k],4)}, v{VA}, s[64:67], s28 offen")
    e(f"s_max_u32 s12, s12, {D}"); e(f"s_sub_u32 s12, s12, {D}")
    e("s_lshl_b32 s12, s12, 0")
    for k in range(RING):
        lab(f"K2_L{k}")
        r = RK_[k]; p = PK_[k]; kn = (k + D) % RING
        e(f"v_pk_fma_f32 {vr(T,2)}, {vr(r,2)}, {vr(WC,2)}, {vr(A,2)} op_sel:[1,0,0] op_sel_hi:[1,1,1]")
        e(f"v_pk_fma_f32 {vr(T+2,2)}, {vr(r,2)}, {vr(WC+2,2)}, {vr(A+2,2)} op_sel:[1,0,0] op_sel_hi:[1,1,1]")
        e("s_sub_u32 s12, s12, 1"); e("s_cselect_b32 s28, s30, s28")
        e("s_waitcnt lgkmcnt(0)")
        e(f"v_add_u32 v{VA}, v{RK_[kn]}, v{LO16}")
        if not ENV("NOLOAD"): e(f"buffer_load_dwordx4 {vr(PK_[kn],4)}, v{VA}, s[64:67], s28 offen")
        e(f"ds_read_b64 {vr(r,2)}, v{RA} offset:{16*k}")
        e(f"s_waitcnt vmcnt({ENV('VM', D)})")
        for i in range(4): e(f"v_dot2_f32_bf16 v{T+i}, v{p+i}, s16, v{T+i}")
        if not ENV("NOTRANS"):
            for i in range(4): e(f"v_exp_f32 v{T+i}, v{T+i}")
        e(f"v_pk_add_f32 {vr(T,2)}, {vr(T,2)}, s[18:19]"); e(f"v_pk_add_f32 {vr(T+2,2)}, {vr(T+2,2)}, s[18:19]")
        if not ENV("NOTRANS"):
            for i in range(4): e(f"v_rcp_f32 v{T+i}, v{T+i}")
        if k == RING - 1: e(f"v_add_u32 v{RA}, {16*RING}, v{RA}")
        e("s_sub_u32 s14, s14, 1")
        e(f"v_pk_add_f32 {vr(DEN,2)}, {vr(DEN,2)}, {vr(T,2)}")
        e(f"v_pk_fma_f32 {vr(NUM,2)}, {vr(T,2)}, {vr(p,2)}, {vr(NUM,2)}")
        e(f"v_pk_add_f32 {vr(DEN+2,2)}, {vr(DEN+2,2)}, {vr(T+2,2)}")
        e(f"v_pk_fma_f32 {vr(NUM+2,2)}, {vr(T+2,2)}, {vr(p+2,2)}, {vr(NUM+2,2)}")
        e(f"s_cbranch_scc0 K2_N{k}")
        e(f"s_movk_i32 s22, {(k+1) % RING}"); e("s_branch K2_FLUSH")
        lab(f"K2_N{k}")
    if ENV("PRIO", "1") == "1" and ENV("PRIO2", "0") == "1":
        e("s_cmp_gt_i32 s12, s50"); e("s_cbranch_scc1 K2_L0")
        e("s_setprio 2"); e("s_cmp_gt_i32 s12, s49"); e("s_cbranch_scc1 K2_L0")
        e("s_setprio 1"); e("s_cmp_gt_i32 s12, s48"); e("s_cbranch_scc1 K2_L0")
        e("s_setprio 0")
    e("s_branch K2_L0")
    lab("K2_FLUSH")
    if ENV("NOFLUSH"): e("s_branch K2_FSK")
    e("s_nop 0")
    e(f"v_permlane32_swap_b32 v{NUM}, v{NUM+1}"); e(f"v_permlane32_swap_b32 v{NUM+2}, v{NUM+3}")
    e(f"v_permlane32_swap_b32 v{DEN}, v{DEN+1}"); e(f"v_permlane32_swap_b32 v{DEN+2}, v{DEN+3}")
    e(f"v_add_u32 v{VA}, s20, v{AOFF}")
    e("s_nop 0")
    e(f"v_add_f32 v{NUM}, v{NUM}, v{NUM+1}"); e(f"v_add_f32 v{NUM+2}, v{NUM+2}, v{NUM+3}")
    e(f"v_add_f32 v{DEN}, v{DEN}, v{DEN+1}"); e(f"v_add_f32 v{DEN+2}, v{DEN+2}, v{DEN+3}")
    e("s_cmp_eq_u32 s21, 0"); e("s_cbranch_scc1 K2_FW")
    e(f"ds_read_b32 v{NUM+1}, v{VA}"); e(f"ds_read_b32 v{NUM+3}, v{VA} offset:8"); e(f"ds_read_b32 v{DEN+1}, v{VA} offset:512"); e(f"ds_read_b32 v{DEN+3}, v{VA} offset:520")
    e("s_waitcnt lgkmcnt(0)")
    e(f"v_add_f32 v{NUM}, v{NUM}, v{NUM+1}"); e(f"v_add_f32 v{NUM+2}, v{NUM+2}, v{NUM+3}")
    e(f"v_add_f32 v{DEN}, v{DEN}, v{DEN+1}"); e(f"v_add_f32 v{DEN+2}, v{DEN+2}, v{DEN+3}")
    lab("K2_FW")
    e(f"ds_write2_b32 v{VA}, v{NUM}, v{NUM+2} offset0:0 offset1:2"); e(f"ds_write2_b32 v{VA}, v{DEN}, v{DEN+2} offset0:128 offset1:130")
    lab("K2_FSK")
    e("s_cmp_eq_u32 s15, 0"); e("s_cbranch_scc1 K2_MEND")
    lab("K2_FN")
    e("s_add_u32 s13, s13, 1")
    e(f"v_readlane_b32 s14, v{STP}, s13")
    e("s_cmp_eq_u32 s14, 0"); e("s_cbranch_scc1 K2_FN")
    if ENV("PRIO", "1") == "1" and ENV("PRIO2", "0") != "1":
        e("s_cmp_gt_u32 s15, s50"); e("s_cbranch_scc1 K2_PD")
        e("s_setprio 2"); e("s_cmp_gt_u32 s15, s49"); e("s_cbranch_scc1 K2_PD")
        e("s_setprio 1"); e("s_cmp_gt_u32 s15, s48"); e("s_cbranch_scc1 K2_PD")
        e("s_setprio 0")
        lab("K2_PD")
    e("s_min_u32 s14, s14, s15"); e("s_sub_u32 s15, s15, s14"); e("s_sub_u32 s14, s14, 1")
    e("s_lshl_b32 s10, s13, 9"); e(f"v_add_u32 v{VA}, s10, v{LO16}"); e(f"ds_read_b128 {vr(A,4)}, v{VA} offset:{AL_L}")
    e("s_lshl_b32 s20, s13, 10"); e(f"s_add_u32 s20, s20, {ACC_L}"); e("s_mov_b32 s21, s31")
    for i in range(4): e(f"v_mov_b32 v{NUM+i}, 0"); e(f"v_mov_b32 v{DEN+i}, 0")
    e("s_waitcnt lgkmcnt(0)")
    for k in range(RING - 1):
        e(f"s_cmp_eq_u32 s22, {k}"); e(f"s_cbranch_scc1 K2_L{k}")
    e(f"s_branch K2_L{RING-1}")
    lab("K2_MEND")
    e("s_setprio 0")
    e("s_waitcnt vmcnt(0) lgkmcnt(0)")
    if REPEAT: e("s_sub_u32 s33, s33, 1"); e("s_cmp_lg_u32 s33, 0"); e("s_cbranch_scc1 K2_REP")
    e("s_lshl_b32 s10, s8, 2"); e(f"s_add_u32 s10, s10, {HID_L}"); e(f"v_mov_b32 v{t0}, s10"); e(f"v_mov_b32 v{t1}, s17")
    e(f"ds_write_b32 v{t0}, v{t1}")
    e("s_waitcnt lgkmcnt(0)")
    stamp(4, 33, 60)
    e("s_barrier")
    stamp(5, 33, 60)
    e("s_cmp_ge_u32 s8, 5"); e("s_cbranch_scc1 K2_FSKIP")
    FN, FD, HN, HD = REC, PB, PB + 8, NUM
    e(f"v_lshrrev_b32 v{t0}, 4, v0"); e(f"v_lshlrev_b32 v{t1}, 5, v0"); e(f"v_and_b32 v{t1}, 0x1e0, v{t1}")
    e(f"v_lshl_add_u32 v{t2}, v{t0}, 10, v{t1}")
    for hh in range(2):
        e(f"ds_read_b128 {vr(FN+4*hh,4)}, v{t2} offset:{ACC_L+16*hh}"); e(f"ds_read_b128 {vr(FD+4*hh,4)}, v{t2} offset:{ACC_L+512+16*hh}")
    e(f"v_and_b32 v{t3}, 15, v{LANE}"); e(f"v_lshlrev_b32 v{t3}, 2, v{t3}"); e(f"ds_read_b32 v{t3}, v{t3} offset:{HID_L}")
    e("s_waitcnt lgkmcnt(0)")
    e(f"v_lshrrev_b32 v{VA}, 2, v{t3}")
    e(f"v_cmp_eq_u32 vcc, s8, v{VA}")
    e("s_and_b32 s10, vcc_lo, 0xffff")
    lab("K2_FOLD")
    e("s_cmp_eq_u32 s10, 0"); e("s_cbranch_scc1 K2_FOLDED")
    e("s_ff1_i32_b32 s11, s10"); e("s_bitset0_b32 s10, s11")
    e(f"v_readlane_b32 s12, v{t3}, s11")
    e("s_lshl_b32 s13, s11, 10"); e(f"s_add_u32 s13, s13, {HEAD_L}"); e(f"v_add_u32 v{VA}, s13, v{t1}")
    for hh in range(2):
        e(f"ds_read_b128 {vr(HN+4*hh,4)}, v{VA} offset:{16*hh}"); e(f"ds_read_b128 {vr(HD+4*hh,4)}, v{VA} offset:{512+16*hh}")
    e("s_and_b32 s12, s12, 3"); e("s_lshl_b32 s12, s12, 4"); e("s_mov_b64 s[14:15], 0xffff"); e("s_lshl_b64 s[14:15], s[14:15], s12")
    e("s_waitcnt lgkmcnt(0)")
    e("s_mov_b64 exec, s[14:15]")
    for i in range(8): e(f"v_add_f32 v{FN+i}, v{FN+i}, v{HN+i}"); e(f"v_add_f32 v{FD+i}, v{FD+i}, v{HD+i}")
    e("s_mov_b64 exec, s[24:25]")
    e("s_branch K2_FOLD")
    lab("K2_FOLDED")
    e("s_cmp_eq_u32 s6, 0"); e("s_cbranch_scc1 K2_FIN")
    for hh in range(2):
        e(f"ds_write_b128 v{t2}, {vr(FN+4*hh,4)} offset:{ACC_L+16*hh}"); e(f"ds_write_b128 v{t2}, {vr(FD+4*hh,4)} offset:{ACC_L+512+16*hh}")
    e("s_cmp_ge_u32 s8, 1"); e("s_cbranch_scc1 K2_NR")
    e(f"v_lshlrev_b32 v{t0}, 2, v{LANE}"); e(f"v_mov_b32 v{t3}, 0"); e(f"ds_write_b32 v{t0}, v{t3}")
    e(f"v_mov_b32 v{t0}, {FLAG_L}"); e(f"ds_write_b32 v{t0}, v{t3}")
    e("s_branch K2_NR")
    lab("K2_FSKIP")
    e("s_cmp_eq_u32 s6, 0"); e("s_cbranch_scc1 K2_DONE")
    lab("K2_NR")
    e("s_mov_b32 s31, 1")
    e("s_branch K2_ROUND")
    lab("K2_FIN")
    U = HN; XU = HD
    for hh in range(2): e(f"ds_read_b128 {vr(U+4*hh,4)}, v{FO} offset:{AL_L+16*hh}")
    for i in range(4):
        e(f"v_lshlrev_b32 v{XU+2*i}, 16, v{X+i}"); e(f"v_and_b32 v{XU+2*i+1}, 0xffff0000, v{X+i}")
    e("s_mov_b32 s10, 0x358637bd")
    for i in range(8): e(f"v_add_f32 v{FD+i}, s10, v{FD+i}")
    for i in range(8): e(f"v_rcp_f32 v{FD+i}, v{FD+i}")
    e("s_waitcnt lgkmcnt(0)")
    for i in range(8): e(f"v_lshlrev_b32 v{U+i}, 16, v{U+i}")
    for i in range(8): e(f"v_fma_f32 v{FN+i}, v{FN+i}, v{FD+i}, v{U+i}")
    for i in range(8):
        e(f"v_mul_f32 v{FD+i}, 0, v{FN+i}")
        e(f"v_cmp_gt_f32 vcc, v{FN+i}, 0")
        e("s_nop 1")
        e(f"v_cndmask_b32 v{FN+i}, v{FD+i}, v{FN+i}, vcc")
        e(f"v_add_f32 v{FN+i}, v{FN+i}, v{XU+i}")
    for i in range(4): e(f"v_cvt_pk_bf16_f32 v{T+i}, v{FN+2*i}, v{FN+2*i+1}")
    e("s_lshl_b32 s9, s5, 8"); e("s_lshl_b32 s12, s7, 8")
    srd(60, 46, 47, "s12", add=["s9"])
    e(f"v_lshlrev_b32 v{t3}, 4, v0")
    e(f"buffer_store_dwordx4 {vr(T,4)}, v{t3}, s[60:63], 0 offen")
    lab("K2_DONE")
    if STAMPS:
        e("s_waitcnt vmcnt(0)")
        stamp(6, 33, 60)
        stamp_flush(7, 33, 4, 1, 16, 40)
    lab("K2_END")
    e("s_endpgm")
    return NV

def kd(name, vgpr, sgpr):
    return f""".p2align 6
.amdhsa_kernel {name}
  .amdhsa_next_free_vgpr {vgpr}
  .amdhsa_next_free_sgpr {sgpr}
  .amdhsa_accum_offset {(vgpr + 3) // 4 * 4}
  .amdhsa_group_segment_fixed_size 0
  .amdhsa_kernarg_size 96
  .amdhsa_user_sgpr_count 2
  .amdhsa_user_sgpr_kernarg_segment_ptr 1
  .amdhsa_system_sgpr_workgroup_id_x 1
.end_amdhsa_kernel
"""

hdr = open("cdna_kernels/" + NAME + ".s.ref").read().split("; Override launch geometry")[0]
gen_k1(); nv = gen_k2()
out = hdr
out += "; @launch kernel=k1_kernel grid=(381,1,1) block=(256,1,1) lds=68608\n"
out += f"; @launch kernel=k2_kernel grid=(512,1,1) block=(1024,1,1) lds={K2_LDS}\n"
out += '.amdgcn_target "amdgcn-amd-amdhsa--gfx950"\n.text\n'
out += "\n".join(L) + "\n"
out += '.section .rodata,"a"\n' + kd("k1_kernel", 256, 96) + kd("k2_kernel", nv, 72)
dst = sys.argv[1] if len(sys.argv) > 1 else "cdna_kernels/" + NAME + ".s"
open(dst, "w").write(out)
print("wrote", dst, len(L), "lines; K2 LDS", K2_LDS, "vgpr", nv)
```
